```python
import torch

def _softmax(x, axis=-1):
    return torch.softmax(x, dim=axis)
def _gelu(x):
    return torch.nn.functional.gelu(x, approximate="tanh")
def _silu(x):
    return torch.nn.functional.silu(x)
def _sigmoid(x):
    return torch.sigmoid(x)
def _layernorm(x, axis=-1, eps=1e-5):
    m = x.mean(dim=axis, keepdim=True)
    v = x.var(dim=axis, keepdim=True, unbiased=False)
    return (x - m) / torch.sqrt(v + eps)
def _scatter_add(tgt, idx, src, axis=0):
    return tgt.clone().index_add_(axis, idx, src)
def _segment_sum(src, seg, n):
    out = torch.zeros((n,) + src.shape[1:], dtype=src.dtype)
    return out.index_add_(0, seg, src)
def _pad(x, pw):
    flat = tuple(v for pair in reversed(pw) for v in pair)
    return torch.nn.functional.pad(x, flat)

kernel_name = 'recurrent_scan__gqa_block_cached__dense_activation_squared_relu__decode'

def setup_inputs():

    _w = (lambda a: (lambda t: t.to(torch.bfloat16) if t.is_floating_point() else t)(torch.as_tensor(a)))
    def _A_setup():
        B, Sq, D = 2, 1, 640
        Hq, Hkv, Sk, Dh = 32, 32, 8192, 192
        assert Hq % Hkv == 0, (Hq, Hkv)
        return {
            "x": _w((lambda *s: torch.randn(*s, dtype=torch.bfloat16) * 0.05)(B, Sq, D)),
            "k_cache": _w((lambda *s: torch.randn(*s, dtype=torch.bfloat16) * 1.6)(B, Hkv, Sk, Dh)),
            "v_cache": _w((lambda *s: torch.randn(*s, dtype=torch.bfloat16) * 0.2)(B, Hkv, Sk, Dh)),
            "wq": _w((lambda *s: torch.randn(*s, dtype=torch.bfloat16) * 1.6)(D, Hq * Dh) * (D ** -0.5)),
            "wo": _w((lambda *s: torch.randn(*s, dtype=torch.bfloat16) * 0.2)(Hq * Dh, D) * ((Hq * Dh) ** -0.5)),
        }
    _A_in = _A_setup()

    def _B_setup():
        B, S, D, F = 2, 1, 640, 1536
        return {
            "x": _w((lambda *s: torch.randn(*s, dtype=torch.bfloat16) * 0.05)(B, S, D)),
            "w1": _w((lambda *s: torch.randn(*s, dtype=torch.bfloat16) * 0.1)(D, F)),
            "b1": _w((lambda *s: torch.randn(*s, dtype=torch.bfloat16) * 0.1)(F)),
            "w2": _w((lambda *s: torch.randn(*s, dtype=torch.bfloat16) * 0.1)(F, D)),
            "b2": _w((lambda *s: torch.randn(*s, dtype=torch.bfloat16) * 0.1)(D)),
        }
    _B_in = _B_setup()

    return {
        "A_x": _A_in["x"],
        "A_k_cache": _A_in["k_cache"],
        "A_v_cache": _A_in["v_cache"],
        "A_wq": _A_in["wq"],
        "A_wo": _A_in["wo"],
        "B_x": _B_in["x"],
        "B_w1": _B_in["w1"],
        "B_b1": _B_in["b1"],
        "B_w2": _B_in["w2"],
        "B_b2": _B_in["b2"],
    }

def reference(A_x, A_k_cache, A_v_cache, A_wq, A_wo, B_x, B_w1, B_b1, B_w2, B_b2):
    def _A_ref(x, k_cache, v_cache, wq, wo):
        B, Sq, D = x.shape
        Hq, Dh = 32, 192
        Hkv = k_cache.shape[1]
        rep = Hq // Hkv
        q = (lambda x, *d: x.permute(*d))((x @ wq).reshape(B, Sq, Hq, Dh), 0, 2, 1, 3)
        k = (lambda x, n, axis: torch.repeat_interleave(x, n, dim=axis))(k_cache, rep, axis=1)
        v = (lambda x, n, axis: torch.repeat_interleave(x, n, dim=axis))(v_cache, rep, axis=1)
        scores = torch.einsum("bhqd,bhkd->bhqk", q, k) * (Dh ** -0.5)
        p = _softmax(scores, axis=-1)
        o = torch.einsum("bhqk,bhkd->bhqd", p, v)
        return (lambda x, *d: x.permute(*d))(o, 0, 2, 1, 3).reshape(B, Sq, Hq * Dh) @ wo

    def _B_ref(x, w1, b1, w2, b2):
        h = torch.einsum("bsd,df->bsf", x, w1) + b1
        zero = torch.zeros_like(h)
        r = torch.where(h > zero, h, zero)
        h = r * r
        out = torch.einsum("bsf,fd->bsd", h, w2) + b2
        return out

    x = A_x
    xn = _layernorm(x, axis=-1)
    s = _A_ref(xn, A_k_cache, A_v_cache, A_wq, A_wo)
    g = _silu(_B_ref(xn, B_w1, B_b1, B_w2, B_b2))
    return x + s * g
```

```python
import re

TRANS = ('v_exp_f32', 'v_log_f32', 'v_rcp_f32', 'v_rsq_f32', 'v_sqrt_f32', 'v_sin_f32', 'v_cos_f32')

def regs_of(tok):
    tok = tok.strip()
    tok = tok.lstrip('-')
    m = re.fullmatch(r'abs\((.*)\)|\|(.*)\|', tok)
    if m: tok = m.group(1) or m.group(2)
    m = re.fullmatch(r'([vsa])(\d+)', tok)
    if m: return {tok}
    m = re.fullmatch(r'([vsa])\[(\d+):(\d+)\]', tok)
    if m: return {'%s%d' % (m.group(1), i) for i in range(int(m.group(2)), int(m.group(3)) + 1)}
    if tok in ('vcc', 'vcc_lo', 'vcc_hi'): return {'vcc'}
    if tok in ('exec', 'exec_lo', 'exec_hi'): return {'exec'}
    if tok == 'm0': return {'m0'}
    return set()

class Ins:
    def __init__(self, text):
        self.text = text
        t = text.split(';')[0].strip()
        parts = t.split(None, 1)
        self.op = parts[0]
        rest = parts[1] if len(parts) > 1 else ''
        ops, depth, cur = [], 0, ''
        for ch in rest:
            if ch in '[(': depth += 1
            if ch in '])': depth -= 1
            if ch == ',' and depth == 0:
                ops.append(cur); cur = ''
            else: cur += ch
        if cur.strip(): ops.append(cur)
        mods = ''
        if ops:
            last = ops[-1].strip().split(None, 1)
            ops[-1] = last[0]
            mods = last[1] if len(last) > 1 else ''
        self.ops = [o.strip() for o in ops]
        self.mods = mods
        op = self.op
        self.is_mfma = op.startswith('v_mfma')
        self.is_valu = op.startswith('v_') and not self.is_mfma
        self.is_vmem = op.startswith(('buffer_', 'global_', 'flat_'))
        self.is_ds = op.startswith('ds_')
        self.is_salu = op.startswith('s_')
        self.is_dpp = ('_dpp' in op) or any(k in mods for k in ('quad_perm', 'row_', 'wave_'))
        self.is_perml = op.startswith('v_permlane')
        self.is_rdlane = op.startswith(('v_readlane', 'v_readfirstlane'))
        self.is_trans = op.replace('_e32', '').replace('_e64', '') in TRANS
        self.is_dot = op.startswith('v_dot')
        R = [regs_of(o) for o in self.ops]
        w, r = set(), set()
        self.srcC = set(); self.srcAB = set(); self.store_data = set()
        if self.is_mfma:
            w = R[0]; self.srcAB = R[1] | R[2]; self.srcC = R[3]; r = self.srcAB | self.srcC
        elif self.is_perml:
            w = R[0] | R[1]; r = R[0] | R[1]
        elif self.is_valu:
            w = set(R[0]); rs = R[1:]
            if op.startswith(('v_add_co', 'v_sub_co', 'v_addc_co', 'v_subb_co', 'v_div_scale', 'v_mad_u64')):
                w |= R[1]; rs = R[2:]
            for x in rs: r |= x
            if op.startswith(('v_fmac', 'v_dot2c', 'v_writelane', 'v_mac')) or self.is_dpp or 'sdwa' in op: r |= R[0]
            if op.startswith('v_cndmask') and len(self.ops) == 3: r |= {'vcc'}
            if self.is_dot:
                self.srcAB = R[1] | R[2]
                self.srcC = R[3] if len(R) > 3 else R[0]
        elif self.is_vmem:
            is_store = '_store' in op
            is_atomic = '_atomic' in op
            if op.startswith('buffer_') and len(R) >= 3:
                if is_store or is_atomic:
                    for x in R: r |= x
                    self.store_data = R[0]
                    if is_atomic and 'sc0' in mods: w = R[0]
                else:
                    w = R[0]
                    for x in R[1:]: r |= x
            elif op.startswith('global_'):
                if is_store:
                    for x in R: r |= x
                    self.store_data = R[1]
                elif is_atomic:
                    if len(R) == 4:
                        w = R[0]
                        for x in R[1:]: r |= x
                    else:
                        for x in R: r |= x
                else:
                    w = R[0]
                    for x in R[1:]: r |= x
        elif self.is_ds:
            if op.startswith(('ds_read', 'ds_bpermute', 'ds_permute', 'ds_swizzle')) or '_rtn' in op:
                w = R[0]
                for x in R[1:]: r |= x
            else:
                for x in R: r |= x
        else:
            if R: w = R[0]
            for x in R[1:]: r |= x
        self.w, self.r = w, r
        self.wide_store = self.is_vmem and ('_store_dwordx3' in op or '_store_dwordx4' in op)
        self.states = 1
        if op == 's_nop': self.states = int(self.ops[0], 0) + 1

def need(p, c):
    n = 0
    pv = {x for x in p.w if x[0] in 'va' and x not in ('vcc',)}
    ps = {x for x in p.w if x[0] == 's' or x == 'vcc'}
    if p.is_valu:
        if c.is_dpp and pv & c.r: n = max(n, 2)
        if c.is_perml and pv & c.r: n = max(n, 2)
        if c.is_rdlane and pv & c.r: n = max(n, 1)
        if p.is_trans and pv & c.r: n = max(n, 1)
        if c.is_mfma and pv & c.r: n = max(n, 2)
        if ps:
            if c.is_valu and ps & c.r: n = max(n, 4 if (c.is_rdlane or c.op.startswith('v_writelane')) else 2)
            if c.is_vmem and ps & c.r: n = max(n, 5)
            if c.is_salu and ps & c.r: n = max(n, 1)
        if p.is_dot:
            if c.op == p.op:
                if pv & c.srcAB: n = max(n, 3)
                elif (pv & c.w) and not (pv & c.srcC): n = max(n, 3)
            elif pv & (c.r | c.w): n = max(n, 3)
        if 'sdwa' in p.op and 'dst_sel' in p.mods and pv & (c.r | c.w): n = max(n, 1)
    if p.is_mfma:
        big = '32x32' in p.op
        raw = 12 if big else 8
        if c.is_mfma:
            if pv & c.srcAB: n = max(n, raw)
            if pv & c.srcC and not (c.srcC == pv and c.op == p.op): n = max(n, raw - 2)
            if pv & c.w and not (c.w == pv and c.op == p.op): n = max(n, raw - 2)
        elif pv & (c.r | c.w): n = max(n, raw)
        if c.is_valu and p.srcC & c.w: n = max(n, 7 if big else 3)
    if p.wide_store and (c.is_valu or c.is_mfma) and p.store_data & c.w: n = max(n, 2)
    if p.wide_store and p.store_data & c.w: n = max(n, 1)
    if p.is_salu and 'm0' in p.w and (('lds' in c.mods.split()) or 'm0' in c.r): n = max(n, 1)
    return n

class Emitter:
    def __init__(self):
        self.lines = []
        self.hist = []
        self.vq = []
        self.nops = 0
    def raw(self, text):
        self.lines.append(text)
    def comment(self, t):
        self.lines.append('    ; ' + t)
    def _pad(self, n):
        while n > 0:
            k = min(n, 16)
            i = Ins('s_nop %d' % (k - 1))
            self.lines.append('    s_nop %d' % (k - 1)); self.hist.append(i); self.nops += 1
            n -= k
    def __call__(self, text, tag=None):
        for t in text.split('\n'):
            t = t.strip()
            if not t or t.startswith(';'): continue
            self.one(t, tag)
    def one(self, text, tag=None):
        ins = Ins(text)
        dist = 0; pad = 0
        for p in reversed(self.hist[-16:]):
            nd = need(p, ins)
            if nd > dist: pad = max(pad, nd - dist)
            dist += p.states
            if dist >= 12: break
        if pad: self._pad(pad)
        if ins.op.startswith(('s_cbranch', 's_branch')):
            self.drain(1)
        self.lines.append('    ' + text)
        self.hist.append(ins)
        if ins.is_vmem and not ins.op.startswith(('buffer_wbl2', 'buffer_inv')):
            self.vq.append(tag if tag is not None else object())
    def drain(self, credit=0):
        dist = credit; pad = 0
        for p in reversed(self.hist[-16:]):
            worst = 0
            if p.is_mfma: worst = 12 if '32x32' in p.op else 8
            elif p.is_valu:
                worst = 3 if p.is_dot else 2
                if any(x[0] == 's' or x == 'vcc' for x in p.w if x != 'vcc'): worst = 5
            elif p.wide_store: worst = 2
            if worst > dist: pad = max(pad, worst - dist)
            dist += p.states
            if dist >= 12: break
        if pad: self._pad(pad)
    def label(self, name):
        self.lines.append(name + ':')
    def wait_vm(self, tag):
        if tag not in self.vq: return
        i = len(self.vq) - 1 - self.vq[::-1].index(tag)
        n = len(self.vq) - 1 - i
        assert n <= 63
        self.one('s_waitcnt vmcnt(%d)' % n)
        self.vq = self.vq[i + 1:]
    def wait_vm_n(self, n):
        self.one('s_waitcnt vmcnt(%d)' % n)
        if len(self.vq) > n: self.vq = self.vq[len(self.vq) - n:] if n else []
    def text(self):
        return '\n'.join(self.lines) + '\n'
```

```python
import sys, os
sys.path.insert(0, os.path.dirname(os.path.abspath(__file__)))
from emit import Emitter
NAME = 'recurrent_scan__gqa_block_cached__dense_activation_squared_relu__decode'

HEAD = open('cdna_kernels/%s.s.ref' % NAME).read().split('; Override launch')[0] if os.path.exists('cdna_kernels/%s.s.ref' % NAME) else ''

QP = 0
OA = 1 << 20
OB = 2 << 20
TS = 16 << 20
L_CNT = 0
L_Q = 64
L_STS = 896
L_OD = 1024
L_XN = 3072
L_ST = 8192
L_YP = 21504
LDS_BYTES = 26624

KVB = 2 * 32 * 8192 * 384
LOG2E = 0x3fb8aa3b
SCALE = 0x3d93cd3a

def gen(D=6, stamps=False, spin=2000000, hpol='sc1', lds=None, catch=6, PRE=48):
    e = Emitter()
    P = dict(x='s[64:65]', K='s[66:67]', V='s[68:69]', wq='s[70:71]', wo='s[72:73]', w1='s[76:77]', b1='s[78:79]',
             w2='s[80:81]', b2='s[82:83]', out='s[84:85]', dbg='s[86:87]', ws='s[88:89]')
    nst = [0]
    def stamp(k):
        if not stamps: return
        e('s_memrealtime s[92:93]')
        e('s_waitcnt lgkmcnt(0)')
        e('v_writelane_b32 v63, s92, %d' % k)
    def dump_stamps():
        if not stamps: return
        e('s_mov_b64 exec, -1')
        e('s_lshl_b32 s92, s2, 3')
        e('s_add_u32 s92, s92, s3')
        e('s_lshl_b32 s92, s92, 8')
        e('s_add_u32 s92, s92, %d' % TS)
        e('v_lshlrev_b32 v62, 2, v1')
        e('v_add_u32 v62, s92, v62')
        e('global_store_dword v62, v63, %s' % P['ws'])
        e('s_waitcnt vmcnt(0)')
    def masks(m0, t0):
        e('v_and_b32 v%d, 1, v1' % t0)
        e('v_lshlrev_b32 v%d, 4, v%d' % (t0, t0))
        e('v_mov_b32 v%d, 0xffff' % (t0 + 1))
        e('v_lshlrev_b32 v%d, v%d, v%d' % (t0, t0, t0 + 1))
        e('v_bfe_u32 v%d, v1, 1, 2' % (t0 + 1))
        for d in range(4):
            e('v_cmp_eq_u32 vcc, %d, v%d' % (d, t0 + 1))
            e('v_cndmask_b32 v%d, 0, v%d, vcc' % (m0 + d, t0))
    def allred8(op, regs, tmps):
        for r in regs: e('%s_dpp v%d, v%d, v%d row_ror:8 row_mask:0xf bank_mask:0xf' % (op, r, r, r))
        for sw in ('v_permlane16_swap_b32', 'v_permlane32_swap_b32'):
            for r, t in zip(regs, tmps): e('v_mov_b32 v%d, v%d' % (t, r))
            for r, t in zip(regs, tmps): e('%s v%d, v%d' % (sw, r, t))
            for r, t in zip(regs, tmps): e('%s v%d, v%d, v%d' % (op, r, r, t))
    def allred_lo8(op, regs):
        for ctl in ('quad_perm:[1,0,3,2]', 'quad_perm:[2,3,0,1]', 'row_half_mirror'):
            for r in regs: e('%s_dpp v%d, v%d, v%d %s row_mask:0xf bank_mask:0xf' % (op, r, r, r, ctl))
    def redscat4(quads):
        for q in quads:
            e('v_permlane32_swap_b32 v%d, v%d' % (q, q + 2))
            e('v_permlane32_swap_b32 v%d, v%d' % (q + 1, q + 3))
        for q in quads:
            e('v_add_f32 v%d, v%d, v%d' % (q, q, q + 2))
            e('v_add_f32 v%d, v%d, v%d' % (q + 1, q + 1, q + 3))
        for q in quads: e('v_permlane16_swap_b32 v%d, v%d' % (q, q + 1))
        for q in quads: e('v_add_f32 v%d, v%d, v%d' % (q, q, q + 1))
        for q in quads: e('v_add_f32_dpp v%d, v%d, v%d row_ror:8 row_mask:0xf bank_mask:0xf' % (q, q, q))
    def rnd(r):
        e('v_cvt_pk_bf16_f32 v%d, v%d, v%d' % (r, r, r))
        e('v_and_b32 v%d, 0xffff0000, v%d' % (r, r))
    def poll(name, loads, regs, t):
        e('s_mov_b32 s40, %d' % spin)
        e.label(name)
        for l in loads: e(l)
        e.wait_vm_n(0)
        rs = list(regs)
        e('v_max3_u32 v%d, v%d, v%d, v%d' % (t, rs[0], rs[1], rs[2])); rs = rs[3:]
        while len(rs) >= 2:
            e('v_max3_u32 v%d, v%d, v%d, v%d' % (t, t, rs[0], rs[1])); rs = rs[2:]
        if rs: e('v_max_u32 v%d, v%d, v%d' % (t, t, rs[0]))
        e('v_cmp_eq_u32 vcc, -1, v%d' % t)
        e('s_cbranch_vccz %s_done' % name)
        e('s_mov_b64 exec, vcc')
        e('s_sleep 1')
        e('s_sub_u32 s40, s40, 1')
        e('s_cmp_lg_u32 s40, 0')
        e('s_cbranch_scc1 %s' % name)
        e.label(name + '_done')
        e('s_mov_b64 exec, -1')

    if stamps: e('s_memrealtime s[90:91]')
    e('s_cmp_ge_u32 s2, 256')
    e('s_cbranch_scc1 L_end')
    e('s_load_dwordx16 s[64:79], s[0:1], 0')
    e('s_load_dwordx8 s[80:87], s[0:1], 64')
    e('s_load_dwordx2 s[88:89], s[0:1], 96')
    e('v_lshrrev_b32 v1, 6, v0')
    e('v_readfirstlane_b32 s3, v1')
    e('v_and_b32 v1, 63, v0')
    e('s_lshr_b32 s4, s2, 3')
    e('s_and_b32 s5, s2, 7')
    e('s_add_u32 s26, s4, 32')
    e('s_cmp_eq_u32 s5, 5')
    e('s_cselect_b32 s26, s4, s26')
    e('s_mul_i32 s25, s26, 13108')
    e('s_lshr_b32 s25, s25, 16')
    e('s_mul_i32 s24, s25, 5')
    e('s_sub_u32 s24, s26, s24')
    e('s_add_u32 s27, s25, 32')
    e('s_mov_b32 s6, 3')
    e('s_cmp_lt_u32 s26, 40')
    e('s_cselect_b32 s6, 1, 3')
    e('s_cmp_lt_u32 s4, 10')
    e('s_cselect_b32 s28, 2, 3')
    e('s_cmp_eq_u32 s5, 7')
    e('s_cselect_b32 s6, s28, s6')
    e('s_cmp_lt_u32 s5, 5')
    e('s_cselect_b32 s6, 0, s6')
    e('s_cselect_b32 s24, s5, s24')
    e('s_cselect_b32 s27, s4, s27')
    e('s_mul_i32 s7, s24, 40')
    e('s_add_u32 s7, s7, s27')
    e('s_lshl_b32 s7, s7, 10')
    e('s_add_u32 s7, s7, %d' % OB)
    if stamps:
        e('v_mov_b32 v63, 0')
    e('s_cmp_ge_u32 s3, 4')
    e('s_cbranch_scc1 L_helper')

    VQ, VM, VACC, VMX, VMT, VL, VS, VSA, VB, VT = 4, 16, 20, 32, 33, 34, 36, 40, 40, 56
    RING = 64
    e('v_lshrrev_b32 v2, 3, v1')
    e('v_mul_u32_u24 v2, 384, v2')
    e('v_and_b32 v3, 7, v1')
    e('v_lshl_add_u32 v2, v3, 4, v2')
    e('v_add_u32 v3, 6144, v2')
    e('s_mul_i32 s30, s4, 3145728')
    e('s_mul_i32 s31, s5, 393216')
    e('s_add_u32 s30, s30, s31')
    e('s_mul_i32 s31, s3, 12288')
    e('s_add_u32 s30, s30, s31')
    e('s_add_u32 s31, s30, 49152')
    e('s_add_u32 s32, s30, %d' % (2 * 49152))
    e('s_add_u32 s33, s30, %d' % (3 * 49152))
    e('s_mov_b32 s10, %d' % KVB); e('s_mov_b32 s11, 0x20000')
    e('s_mov_b32 s14, %d' % KVB); e('s_mov_b32 s15, 0x20000')
    e('s_waitcnt lgkmcnt(0)')
    e('s_mov_b32 s8, s66'); e('s_mov_b32 s9, s67')
    e('s_mov_b32 s12, s68'); e('s_mov_b32 s13, s69')
    def kvload(i, buf, soff, tag):
        srd = 's[8:11]' if i < 12 else 's[12:15]'
        g, n = divmod(i % 12, 3)
        r = RING + 4 * buf
        e('buffer_load_dwordx4 v[%d:%d], v%d, %s, %s offen offset:%d nt' % (r, r + 3, 2 + g // 2, srd, soff, (g % 2) * 3072 + n * 128), tag=tag)
    def sreg_of_step(s): return 's%d' % (30 + s)
    def issue_abs(k):
        s, i = divmod(k, 24)
        buf = k if k < 48 else i
        kvload(i, buf, sreg_of_step(s), ('kv', k))
    for k in range(D): issue_abs(k)
    e('s_barrier')
    if stamps: e('v_writelane_b32 v63, s90, 0')
    masks(VM, VT)
    e('s_mov_b32 s34, 0x%x' % SCALE)
    e('s_mov_b32 s35, 0x%x' % LOG2E)
    def reset_acc():
        for r in range(12): e('v_mov_b32 v%d, 0' % (VACC + r))
        e('v_mov_b32 v%d, 0xff800000' % VMX)
        e('v_mov_b32 v%d, 0xff800000' % VMT)
        e('v_mov_b32 v%d, 0' % VL)
    reset_acc()
    e('s_mul_i32 s36, s4, %d' % (192 * 1280))
    e('s_mul_i32 s37, s25, %d' % (192 * 1280))
    e('s_cmp_eq_u32 s6, 0')
    e('s_cselect_b32 s36, s36, s37')
    e('s_cselect_b32 s16, s72, s80')
    e('s_cselect_b32 s17, s73, s81')
    e('s_cselect_b32 s18, %d, %d' % (6144 * 1280, 0))
    e('s_cmp_eq_u32 s6, 1')
    e('s_cselect_b32 s18, %d, s18' % (1536 * 1280))
    e('s_mov_b32 s19, 0x20000')
    e('s_lshl_b32 s37, s24, 8')
    e('s_add_u32 s36, s36, s37')
    e('s_mul_i32 s37, s3, %d' % (48 * 1280))
    e('s_add_u32 s36, s36, s37')
    for k in range(D, PRE):
        e.wait_vm_n(D - 1)
        issue_abs(k)
    stamp(1)
    e('s_barrier')
    stamp(2)
    def load_q(b):
        e('v_and_b32 v%d, 7, v1' % VT)
        e('v_lshlrev_b32 v%d, 4, v%d' % (VT, VT))
        for n in range(3):
            e('ds_read_b128 v[%d:%d], v%d offset:%d' % (VQ + 4 * n, VQ + 4 * n + 3, VT, L_Q + b * 384 + n * 128))
        e('s_waitcnt lgkmcnt(0)')
    load_q(0)
    lab = [0]
    def step(bufbase, pre, post, last=False):
        for i in range(12):
            g, n = divmod(i, 3)
            pre(i)
            r = RING + 4 * (bufbase + i)
            for d in range(4):
                acc = VSA + 2 * g + (d & 1)
                c = '0' if (n == 0 and d < 2) else 'v%d' % acc
                e('v_dot2_f32_bf16 v%d, v%d, v%d, %s' % (acc, r + d, VQ + 4 * n + d, c))
            post(i)
        S = [VS + g for g in range(4)]
        for g in range(4): e('v_add_f32 v%d, v%d, v%d' % (S[g], VSA + 2 * g, VSA + 2 * g + 1))
        allred_lo8('v_add_f32', S)
        def rnd4():
            e('v_cvt_pk_bf16_f32 v%d, v%d, v%d' % (VT, S[0], S[1]))
            e('v_cvt_pk_bf16_f32 v%d, v%d, v%d' % (VT + 1, S[2], S[3]))
            e('v_lshlrev_b32 v%d, 16, v%d' % (S[0], VT))
            e('v_and_b32 v%d, 0xffff0000, v%d' % (S[1], VT))
            e('v_lshlrev_b32 v%d, 16, v%d' % (S[2], VT + 1))
            e('v_and_b32 v%d, 0xffff0000, v%d' % (S[3], VT + 1))
        rnd4()
        for g in range(4): e('v_mul_f32 v%d, s34, v%d' % (S[g], S[g]))
        rnd4()
        e('v_max3_f32 v%d, v%d, v%d, v%d' % (VT, S[0], S[1], S[2]))
        e('v_max_f32 v%d, v%d, v%d' % (VT, VT, S[3]))
        e('v_cmp_gt_f32 vcc, v%d, v%d' % (VT, VMX))
        lab[0] += 1
        sk = 'L_nomax%d' % lab[0]
        e('s_cbranch_vccz %s' % sk)
        e('v_max_f32 v%d, v%d, v%d' % (VMX, VT, VMX))
        allred8('v_max_f32', [VMX], [VT + 1])
        e('v_mul_f32 v%d, s35, v%d' % (VT, VMX))
        e('v_sub_f32 v%d, v%d, v%d' % (VT + 1, VMT, VT))
        e('v_exp_f32 v%d, v%d' % (VT + 1, VT + 1))
        e('v_mov_b32 v%d, v%d' % (VMT, VT))
        for r in range(12): e('v_mul_f32 v%d, v%d, v%d' % (VACC + r, VACC + r, VT + 1))
        e('v_mul_f32 v%d, v%d, v%d' % (VL, VL, VT + 1))
        e.label(sk)
        for g in range(4): e('v_fma_f32 v%d, v%d, s35, -v%d' % (S[g], S[g], VMT))
        for g in range(4): e('v_exp_f32 v%d, v%d' % (S[g], S[g]))
        for g in range(4): e('v_cvt_pk_bf16_f32 v%d, v%d, v%d' % (VT + g, S[g], S[g]))
        for g in range(4):
            for d in range(4): e('v_and_b32 v%d, v%d, v%d' % (VB + 4 * g + d, VT + g, VM + d))
        e('v_add_f32 v%d, v%d, v%d' % (S[0], S[0], S[1]))
        e('v_add_f32 v%d, v%d, v%d' % (S[2], S[2], S[3]))
        e('v_add_f32 v%d, v%d, v%d' % (VL, VL, S[0]))
        e('v_add_f32 v%d, v%d, v%d' % (VL, VL, S[2]))
        if last: stash_stats(1)
        for i in range(12, 24):
            g, n = divmod(i - 12, 3)
            pre(i)
            r = RING + 4 * (bufbase + i)
            e('v_mfma_f32_16x16x32_bf16 v[%d:%d], v[%d:%d], v[%d:%d], v[%d:%d]' % (
                VACC + 4 * n, VACC + 4 * n + 3, r, r + 3, VB + 4 * g, VB + 4 * g + 3, VACC + 4 * n, VACC + 4 * n + 3))
            post(i)
    def stash_stats(b):
        allred8('v_add_f32', [VL], [VT])
        e('v_mov_b32 v%d, v%d' % (VT, VMT))
        e('v_mov_b32 v%d, v%d' % (VT + 1, VL))
        e('s_lshl_b32 s38, s3, 3')
        e('v_mov_b32 v%d, s38' % (VT + 2))
        e('s_mov_b64 exec, 1')
        e('ds_write_b64 v%d, v[%d:%d] offset:%d' % (VT + 2, VT, VT + 1, L_STS + b * 32))
        e('s_mov_b64 exec, -1')
        e('v_lshrrev_b32 v%d, 5, v1' % (VT + 3))
        e('v_mul_u32_u24 v%d, 768, v%d' % (VT + 3, VT + 3))
        e('v_bfe_u32 v%d, v1, 4, 1' % (VT + 4))
        e('v_lshl_add_u32 v%d, v%d, 7, v%d' % (VT + 3, VT + 4, VT + 3))
        e('v_and_b32 v%d, 7, v1' % (VT + 4))
        e('v_lshl_add_u32 v%d, v%d, 4, v%d' % (VT + 3, VT + 4, VT + 3))
        e('s_mul_i32 s38, s3, 1536')
        e('v_add_u32 v%d, s38, v%d' % (VT + 3, VT + 3))
    def stash_acc(b):
        e('s_mov_b32 exec_lo, 0x00ff00ff')
        e('s_mov_b32 exec_hi, 0xff00ff00')
        for n in range(3):
            e('ds_write_b128 v%d, v[%d:%d] offset:%d' % (VT + 3, VACC + 4 * n, VACC + 4 * n + 3, L_ST + b * 6144 + n * 256))
        e('s_mov_b64 exec, -1')

    nxt = [PRE]
    def mk(base):
        def pre(i):
            k = base + i
            e.wait_vm(('kv', k))
            while nxt[0] <= k + D and (nxt[0] < 48 or nxt[0] - 48 < k):
                issue_abs(nxt[0]); nxt[0] += 1
        def post(i):
            k = base + i
            if k < 48 and nxt[0] >= 48:
                want = 48 + min(k + 1, D + max(0, (k + 1 - D) // catch))
                while nxt[0] < want:
                    issue_abs(nxt[0]); nxt[0] += 1
        return pre, post
    for s in range(3):
        pre, post = mk(24 * s)
        step(24 * s if s < 2 else 0, pre, post)
    assert nxt[0] == 72 + D
    stamp(3)
    e('s_mov_b32 s30, s33')
    e('s_mov_b32 s39, 3')
    e.vq = [('lp', i) for i in range(D)]
    e.label('L_loop')
    e('s_cmp_lg_u32 s39, 8')
    e('s_cbranch_scc1 L_noswitch')
    stash_stats(0)
    stash_acc(0)
    load_q(1)
    reset_acc()
    stamp(4)
    e.label('L_noswitch')
    e('s_cmp_eq_u32 s39, 7')
    e('s_cselect_b32 s31, %d, %d' % (KVB // 2 - 7 * 49152, 0))
    e('s_cselect_b32 s38, 0, 49152')
    e('s_add_u32 s31, s31, s38')
    e('s_add_u32 s31, s31, s30')
    def pre(i):
        e.wait_vm(('lp', i))
        k = i + D
        if k < 24: kvload(k, k, 's30', ('lp', k))
        else: kvload(k - 24, k - 24, 's31', ('lp', k - 24))
    step(0, pre, lambda i: None)
    e('s_mov_b32 s30, s31')
    e('s_add_u32 s39, s39, 1')
    e('s_cmp_lt_u32 s39, 15')
    e('s_cbranch_scc1 L_loop')
    assert e.vq == [('lp', i) for i in range(D)]
    WREG = RING + 4 * 24
    e('v_lshrrev_b32 v35, 4, v1')
    e('v_mul_u32_u24 v35, %d, v35' % (12 * 1280))
    e('v_and_b32 v%d, 15, v1' % VT)
    e('v_lshl_add_u32 v35, v%d, 4, v35' % VT)
    e('s_add_u32 s37, s36, %d' % (4 * 1280))
    e('s_add_u32 s31, s36, %d' % (8 * 1280))
    wn = [0]
    def wload():
        t = wn[0]; wn[0] += 1
        e('buffer_load_dwordx4 v[%d:%d], v35, s[16:19], %s offen offset:%d nt' % (WREG + 4 * t, WREG + 4 * t + 3, ('s36', 's37', 's31')[t // 4], (t % 4) * 1280), tag=('w', t))
    def pre(i):
        e.wait_vm(('lp', i))
        k = i + D
        if k < 24: kvload(k, k, 's30', ('lp', k))
        else:
            left = 24 - i
            while wn[0] < 12 and (12 - wn[0]) > (left - 1) * 2: wload()
            if i == 23:
                while wn[0] < 12: wload()
    step(0, pre, lambda i: None, last=True)
    stamp(5)
    stash_acc(1)
    e('s_waitcnt lgkmcnt(0)')
    e('s_barrier')
    X = RING
    e('s_cmp_ge_u32 s3, 2')
    e('s_cbranch_scc1 L_pubdone')
    e('s_mul_i32 s38, s3, 6144')
    e('v_lshl_add_u32 v%d, v1, 4, s38' % VT)
    e('s_lshl_b32 s38, s3, 5')
    e('v_mov_b32 v%d, s38' % (VT + 1))
    e('ds_read_b128 v[%d:%d], v%d offset:%d' % (X + 32, X + 35, VT + 1, L_STS))
    e('ds_read_b128 v[%d:%d], v%d offset:%d' % (X + 36, X + 39, VT + 1, L_STS + 16))
    for k in range(8):
        e('ds_read_b128 v[%d:%d], v%d offset:%d' % (X + 4 * k, X + 4 * k + 3, VT, L_ST + 768 * k))
    e('s_lshl_b32 s38, s2, 1')
    e('s_add_u32 s38, s38, s3')
    e('s_lshl_b32 s38, s38, 10')
    e('s_add_u32 s38, s38, %d' % OA)
    e('v_lshl_add_u32 v%d, v1, 4, s38' % (VT + 2))
    e('s_waitcnt lgkmcnt(8)')
    MT = [X + 32, X + 34, X + 36, X + 38]; LL = [X + 33, X + 35, X + 37, X + 39]
    e('v_max3_f32 v%d, v%d, v%d, v%d' % (X + 40, MT[0], MT[1], MT[2]))
    e('v_max_f32 v%d, v%d, v%d' % (X + 40, X + 40, MT[3]))
    for w in range(4): e('v_sub_f32 v%d, v%d, v%d' % (MT[w], MT[w], X + 40))
    for w in range(4): e('v_exp_f32 v%d, v%d' % (MT[w], MT[w]))
    e('v_mul_f32 v%d, v%d, v%d' % (X + 41, MT[0], LL[0]))
    for w in range(1, 4): e('v_fma_f32 v%d, v%d, v%d, v%d' % (X + 41, MT[w], LL[w], X + 41))
    e('s_waitcnt lgkmcnt(0)')
    for w in range(4):
        for r in range(4): e('v_add_f32 v%d, v%d, v%d' % (X + 8 * w + r, X + 8 * w + r, X + 8 * w + 4 + r))
    for r in range(4): e('v_mul_f32 v%d, v%d, v%d' % (X + r, X + r, MT[0]))
    for w in range(1, 4):
        for r in range(4): e('v_fma_f32 v%d, v%d, v%d, v%d' % (X + r, X + 8 * w + r, MT[w], X + r))
    e('s_mov_b32 exec_lo, 0')
    e('s_mov_b32 exec_hi, 0x10000')
    e('v_mov_b32 v%d, v%d' % (X, X + 40))
    e('v_mov_b32 v%d, v%d' % (X + 1, X + 41))
    e('v_mov_b32 v%d, 0' % (X + 2))
    e('v_mov_b32 v%d, 0' % (X + 3))
    e('s_mov_b32 exec_lo, -1')
    e('s_mov_b32 exec_hi, 0x1ffff')
    for r in range(4): e('v_min_u32 v%d, -2, v%d' % (X + r, X + r))
    e('global_store_dwordx4 v%d, v[%d:%d], %s %s' % (VT + 2, X, X + 3, P['ws'], hpol))
    e('s_mov_b64 exec, -1')
    e.label('L_pubdone')
    stamp(6)
    e('s_cmp_eq_u32 s6, 3')
    e('s_cbranch_scc1 L_exit')
    e('s_cmp_eq_u32 s6, 2')
    e('s_cbranch_scc1 L_reducer')
    e('s_cmp_eq_u32 s6, 1')
    e('s_cbranch_scc1 L_proj')
    X = RING + 48
    e('s_lshl_b32 s38, s4, 14')
    e('s_lshr_b32 s41, s3, 1')
    e('s_and_b32 s42, s3, 1')
    e('s_lshl_b32 s43, s41, 10')
    e('s_add_u32 s38, s38, s43')
    e('s_add_u32 s38, s38, %d' % OA)
    e('v_lshrrev_b32 v%d, 3, v1' % VT)
    e('v_lshl_add_u32 v%d, v%d, 11, s38' % (VT, VT))
    e('v_and_b32 v%d, 7, v1' % (VT + 2))
    e('v_lshl_add_u32 v%d, v%d, 4, v%d' % (VT + 1, VT + 2, VT))
    e('s_mul_i32 s43, s42, 384')
    e('v_add_u32 v%d, s43, v%d' % (VT + 1, VT + 1))
    e('s_mul_i32 s44, s41, 768')
    e('s_add_u32 s44, s44, s43')
    e('v_lshl_add_u32 v%d, v%d, 2, s44' % (VT + 2, VT + 2))
    e('v_lshrrev_b32 v%d, 4, v1' % (VT + 3))
    e('v_lshl_add_u32 v%d, v%d, 5, v%d' % (VT + 2, VT + 3, VT + 2))
    loads = ['global_load_dwordx4 v[%d:%d], v%d, %s offset:%d %s' % (X + 4 * i, X + 4 * i + 3, VT + 1, P['ws'], 128 * i, hpol) for i in range(3)]
    loads.append('global_load_dwordx2 v[%d:%d], v%d, %s offset:768 %s' % (X + 12, X + 13, VT, P['ws'], hpol))
    poll('L_pollA', loads, range(X, X + 14), VT + 3)
    stamp(7)
    e('v_mov_b32 v%d, v%d' % (X + 14, X + 12))
    allred8('v_max_f32', [X + 14], [X + 15])
    e('v_sub_f32 v%d, v%d, v%d' % (X + 12, X + 12, X + 14))
    e('v_exp_f32 v%d, v%d' % (X + 12, X + 12))
    e('v_mul_f32 v%d, v%d, v%d' % (X + 13, X + 13, X + 12))
    for r in range(12): e('v_mul_f32 v%d, v%d, v%d' % (X + r, X + r, X + 12))
    allred8('v_add_f32', [X + 13], [X + 15])
    e('v_rcp_f32 v%d, v%d' % (X + 13, X + 13))
    redscat4([X, X + 4, X + 8])
    for i in range(3): e('v_mul_f32 v%d, v%d, v%d' % (X + 4 * i, X + 4 * i, X + 13))
    for i in range(3): e('v_cvt_pk_bf16_f32 v%d, v%d, v%d' % (X + 4 * i, X + 4 * i, X + 4 * i))
    for i in range(3): e('ds_write_b32 v%d, v%d offset:%d' % (VT + 2, X + 4 * i, L_OD + 128 * i))
    e('s_waitcnt lgkmcnt(0)')
    e('s_barrier')
    e.label('L_proj')
    X = RING
    e('v_bfe_u32 v%d, v1, 3, 1' % VT)
    e('v_mul_u32_u24 v%d, 768, v%d' % (VT, VT))
    e('v_lshrrev_b32 v%d, 4, v1' % (VT + 1))
    e('v_mul_u32_u24 v%d, 48, v%d' % (VT + 1, VT + 1))
    e('s_mul_i32 s38, s3, 192')
    e('v_add3_u32 v%d, v%d, v%d, s38' % (VT, VT, VT + 1))
    for i in range(3):
        e('ds_read_b128 v[%d:%d], v%d offset:%d' % (X + 4 * i, X + 4 * i + 3, VT, L_OD + 16 * i))
    for r in range(4): e('v_mov_b32 v%d, 0' % (VACC + r))
    e('s_lshl_b32 s38, s3, 10')
    e('v_lshl_add_u32 v%d, v1, 4, s38' % (VT + 1))
    e('s_waitcnt vmcnt(0) lgkmcnt(0)')
    e.vq = []
    for t in range(12):
        b = X + 16 + 4 * t
        for d in range(4): e('v_and_b32 v%d, v%d, v%d' % (b + d, X + t, VM + d))
        if t > 0:
            bb = X + 16 + 4 * (t - 1)
            e('v_mfma_f32_16x16x32_bf16 v[%d:%d], v[%d:%d], v[%d:%d], v[%d:%d]' % (VACC, VACC + 3, WREG + 4 * (t - 1), WREG + 4 * (t - 1) + 3, bb, bb + 3, VACC, VACC + 3))
    bb = X + 16 + 44
    e('v_mfma_f32_16x16x32_bf16 v[%d:%d], v[%d:%d], v[%d:%d], v[%d:%d]' % (VACC, VACC + 3, WREG + 44, WREG + 47, bb, bb + 3, VACC, VACC + 3))
    e('ds_write_b128 v%d, v[%d:%d] offset:%d' % (VT + 1, VACC, VACC + 3, L_YP))
    e('s_waitcnt lgkmcnt(0)')
    e('s_barrier')
    e('s_cmp_lg_u32 s3, 0')
    e('s_cbranch_scc1 L_exit')
    for w in range(1, 4):
        e('ds_read_b128 v[%d:%d], v%d offset:%d' % (X + 4 * w, X + 4 * w + 3, VT + 1, L_YP + 1024 * w))
    e('v_add_u32 v%d, s7, v%d' % (VT + 1, VT + 1))
    e('s_waitcnt lgkmcnt(0)')
    for r in range(4): e('v_add_f32 v%d, v%d, v%d' % (VACC + r, VACC + r, X + 4 + r))
    for r in range(4): e('v_add_f32 v%d, v%d, v%d' % (X + 8 + r, X + 8 + r, X + 12 + r))
    for r in range(4): e('v_add_f32 v%d, v%d, v%d' % (VACC + r, VACC + r, X + 8 + r))
    for r in range(4): e('v_min_u32 v%d, -2, v%d' % (VACC + r, VACC + r))
    e('global_store_dwordx4 v%d, v[%d:%d], %s %s' % (VT + 1, VACC, VACC + 3, P['ws'], hpol))
    stamp(8)
    e('s_branch L_exit')

    e.label('L_reducer')
    X = RING + 48
    e('s_lshl_b32 s38, s4, 2')
    e('s_add_u32 s38, s38, s3')
    e('s_lshr_b32 s41, s38, 3')
    e('s_and_b32 s42, s38, 7')
    e('s_mul_i32 s43, s41, %d' % (40 * 1024))
    e('s_lshl_b32 s44, s42, 7')
    e('s_add_u32 s43, s43, s44')
    e('s_add_u32 s43, s43, %d' % OB)
    e('v_lshrrev_b32 v%d, 3, v1' % VT)
    e('v_lshl_add_u32 v%d, v%d, 10, s43' % (VT, VT))
    e('v_and_b32 v%d, 7, v1' % (VT + 5))
    e('v_lshl_add_u32 v%d, v%d, 4, v%d' % (VT, VT + 5, VT))
    for i in range(1, 5): e('v_add_u32 v%d, %d, v%d' % (VT + i, 8192 * i, VT))
    e('s_lshl_b32 s43, s41, 7')
    e('s_lshr_b32 s44, s42, 1')
    e('s_lshl_b32 s44, s44, 5')
    e('s_add_u32 s43, s43, s44')
    e('v_lshrrev_b32 v%d, 4, v1' % (X + 24))
    e('v_lshl_add_u32 v%d, v%d, 3, v%d' % (X + 24, X + 24, VT + 5))
    e('v_add_u32 v%d, s43, v%d' % (X + 24, X + 24))
    e('v_lshlrev_b32 v%d, 1, v%d' % (X + 24, X + 24))
    e('s_and_b32 s44, s42, 1')
    e('s_mul_i32 s44, s44, 1280')
    e('v_add_u32 v%d, s44, v%d' % (X + 25, X + 24))
    e('global_load_ushort v%d, v%d, %s' % (X + 26, X + 24, P['b2']))
    e('global_load_ushort v%d, v%d, %s' % (X + 27, X + 25, P['x']))
    poll('L_pollF', ['global_load_dwordx4 v[%d:%d], v%d, %s %s' % (X + 16, X + 19, VT + 4, P['ws'], hpol)], range(X + 16, X + 20), X + 28)
    redscat4([X + 16])
    F = X + 16
    rnd(F)
    e('v_lshlrev_b32 v%d, 16, v%d' % (X + 26, X + 26))
    e('v_lshlrev_b32 v%d, 16, v%d' % (X + 27, X + 27))
    e('v_add_f32 v%d, v%d, v%d' % (F, F, X + 26))
    rnd(F)
    e('v_mul_f32 v%d, s35, v%d' % (F + 1, F))
    e('v_exp_f32 v%d, -v%d' % (F + 1, F + 1))
    e('v_add_f32 v%d, 1.0, v%d' % (F + 1, F + 1))
    e('v_rcp_f32 v%d, v%d' % (F + 1, F + 1))
    e('v_mul_f32 v%d, v%d, v%d' % (F, F, F + 1))
    rnd(F)
    stamp(7)
    poll('L_pollB', ['global_load_dwordx4 v[%d:%d], v%d, %s %s' % (X + 4 * i, X + 4 * i + 3, VT + i, P['ws'], hpol) for i in range(4)], range(X, X + 16), X + 28)
    stamp(8)
    for r in range(4): e('v_add_f32 v%d, v%d, v%d' % (X + r, X + r, X + 4 + r))
    for r in range(4): e('v_add_f32 v%d, v%d, v%d' % (X + 8 + r, X + 8 + r, X + 12 + r))
    for r in range(4): e('v_add_f32 v%d, v%d, v%d' % (X + r, X + r, X + 8 + r))
    redscat4([X])
    rnd(X)
    e('v_mul_f32 v%d, v%d, v%d' % (X, X, F))
    rnd(X)
    e('v_add_f32 v%d, v%d, v%d' % (X, X, X + 27))
    e('v_cvt_pk_bf16_f32 v%d, v%d, v%d' % (X, X, X))
    e('s_mov_b32 exec_lo, 0x00ff00ff')
    e('s_mov_b32 exec_hi, 0x00ff00ff')
    e('global_store_short v%d, v%d, %s' % (X + 25, X, P['out']))
    if stamps:
        e('s_waitcnt vmcnt(0)')
        stamp(9)
    e('s_branch L_exit')

    e.label('L_helper')
    e.vq = []
    XR, WR, VMh, T = 8, 64, 16 + 8, 40
    e('s_sub_u32 s29, s3, 4')
    e('v_lshlrev_b32 v2, 2, v1')
    e('s_mul_i32 s30, s2, 2731')
    e('s_lshr_b32 s30, s30, 16')
    e('s_mul_i32 s31, s30, 24')
    e('s_sub_u32 s31, s2, s31')
    e('s_mul_i32 s32, s31, 21846')
    e('s_lshr_b32 s32, s32, 16')
    e('s_mul_i32 s33, s32, 3')
    e('s_sub_u32 s33, s31, s33')
    e('s_mul_i32 s34, s2, 3')
    e('s_add_u32 s34, s34, s29')
    e('s_add_u32 s35, s2, 768')
    e('s_mov_b32 s46, 3072')
    e('s_cmp_lt_u32 s29, 3')
    e('s_cselect_b32 s30, s4, s30')
    e('s_cselect_b32 s32, s5, s32')
    e('s_cselect_b32 s33, s29, s33')
    e('s_cselect_b32 s34, s34, s35')
    e('s_cselect_b32 s35, 12288, s46')
    e('s_cselect_b32 s18, %d, %d' % (640 * 12288, 0))
    e('s_cselect_b32 s36, 0, %d' % (640 * 3072))
    e('s_add_u32 s18, s18, s36')
    e('s_mov_b32 s19, 0x20000')
    e('s_mul_i32 s36, s32, 80')
    e('s_mul_i32 s37, s36, s35')
    e('s_mul_i32 s38, s30, 384')
    e('s_add_u32 s37, s37, s38')
    e('s_lshl_b32 s38, s33, 7')
    e('s_add_u32 s37, s37, s38')
    e('s_mul_i32 s38, s35, 10')
    e('v_lshrrev_b32 v3, 3, v1')
    e('v_mul_lo_u32 v3, v3, s38')
    e('v_and_b32 v4, 7, v1')
    e('v_lshl_add_u32 v3, v4, 4, v3')
    e('v_mov_b32 v5, 0')
    e('ds_write_b32 v5, v5 offset:%d' % L_CNT)
    e('s_waitcnt lgkmcnt(0)')
    e('s_cmp_lt_u32 s29, 3')
    e('s_cselect_b32 s16, s70, s76')
    e('s_cselect_b32 s17, s71, s77')
    e('s_cselect_b32 s45, 0, s2')
    e('s_cmp_lt_u32 s45, 192')
    e('s_cselect_b32 s45, 1, 0')
    e('s_cbranch_scc0 L_hskip1')
    for b in range(2):
        for i in range(5):
            e('global_load_dword v%d, v2, %s offset:%d' % (XR + 5 * b + i, P['x'], b * 1280 + i * 256), tag='x')
    for g in range(10):
        e('buffer_load_dwordx4 v[%d:%d], v3, s[16:19], s37 offen nt' % (WR + 4 * g, WR + 4 * g + 3), tag=('w', g))
        if g < 9: e('s_add_u32 s37, s37, s35')
    e.label('L_hskip1')
    e('s_barrier')
    if stamps: e('v_writelane_b32 v63, s90, 0')
    e('s_cmp_eq_u32 s45, 0')
    e('s_cbranch_scc1 L_harrive')
    for r in range(4): e('v_mov_b32 v%d, -1' % (T + r))
    e('s_lshl_b32 s38, s2, 1')
    e('s_add_u32 s38, s38, s29')
    e('s_lshl_b32 s38, s38, 10')
    e('s_add_u32 s38, s38, %d' % OA)
    e('s_cmp_eq_u32 s29, 2')
    e('s_cselect_b32 s38, s7, s38')
    e('s_cselect_b32 s39, s6, 0')
    e('s_cselect_b32 s41, -1, 0x1ffff')
    e('v_lshl_add_u32 v%d, v1, 4, s38' % (T + 4))
    e('s_cmp_eq_u32 s29, 3')
    e('s_cselect_b32 s39, 2, s39')
    e('s_cmp_ge_u32 s39, 2')
    e('s_cbranch_scc1 L_noclear')
    e('s_mov_b32 exec_hi, s41')
    vq_save = list(e.vq)
    e('global_store_dwordx4 v%d, v[%d:%d], %s %s' % (T + 4, T, T + 3, P['ws'], hpol))
    e.vq = vq_save
    e('s_mov_b64 exec, -1')
    e.label('L_noclear')
    masks(VMh, T + 6)
    F0 = 108
    e.wait_vm('x')
    stamp(1)
    for k in range(10):
        e('v_lshlrev_b32 v%d, 16, v%d' % (F0 + 2 * k, XR + k))
        e('v_and_b32 v%d, 0xffff0000, v%d' % (F0 + 2 * k + 1, XR + k))
    SM = [T, T + 1]; TM = [T + 2, T + 3]
    for b in range(2):
        e('v_add_f32 v%d, v%d, v%d' % (SM[b], F0 + 10 * b, F0 + 10 * b + 1))
    for k in range(2, 10):
        for b in range(2): e('v_add_f32 v%d, v%d, v%d' % (SM[b], SM[b], F0 + 10 * b + k))
    allred_lo8('v_add_f32', SM)
    allred8('v_add_f32', SM, TM)
    e('s_mov_b32 s38, 0x3acccccd')
    for b in range(2): e('v_mul_f32 v%d, s38, v%d' % (SM[b], SM[b]))
    VR = [T + 4, T + 5]
    for k in range(10):
        for b in range(2): e('v_sub_f32 v%d, v%d, v%d' % (TM[b], F0 + 10 * b + k, SM[b]))
        for b in range(2):
            if k == 0: e('v_mul_f32 v%d, v%d, v%d' % (VR[b], TM[b], TM[b]))
            else: e('v_fma_f32 v%d, v%d, v%d, v%d' % (VR[b], TM[b], TM[b], VR[b]))
    allred_lo8('v_add_f32', VR)
    allred8('v_add_f32', VR, TM)
    for b in range(2): e('v_mul_f32 v%d, s38, v%d' % (VR[b], VR[b]))
    for b in range(2): rnd(SM[b])
    for b in range(2): rnd(VR[b])
    for b in range(2): e('v_add_f32 v%d, 0x3727c5ac, v%d' % (VR[b], VR[b]))
    for b in range(2): rnd(VR[b])
    for b in range(2): e('v_sqrt_f32 v%d, v%d' % (VR[b], VR[b]))
    for b in range(2): rnd(VR[b])
    for b in range(2): e('v_rcp_f32 v%d, v%d' % (TM[b], VR[b]))
    for b in range(2):
        for k in range(10): e('v_sub_f32 v%d, v%d, v%d' % (F0 + 10 * b + k, F0 + 10 * b + k, SM[b]))
    for k in range(20): rnd(F0 + k)
    G0 = 128
    for b in range(2):
        for k in range(10): e('v_mul_f32 v%d, v%d, v%d' % (G0 + 10 * b + k, F0 + 10 * b + k, TM[b]))
    for b in range(2):
        for k in range(10): e('v_fma_f32 v%d, -v%d, v%d, v%d' % (F0 + 10 * b + k, G0 + 10 * b + k, VR[b], F0 + 10 * b + k))
    for b in range(2):
        for k in range(10): e('v_fma_f32 v%d, v%d, v%d, v%d' % (G0 + 10 * b + k, F0 + 10 * b + k, TM[b], G0 + 10 * b + k))
    for k in range(20): e('v_cvt_pk_bf16_f32 v%d, v%d, v%d' % (G0 + k, G0 + k, G0 + k))
    e('v_lshlrev_b32 v%d, 3, v1' % T)
    for b in range(2):
        for i in range(5):
            e('ds_write_b64 v%d, v[%d:%d] offset:%d' % (T, G0 + 10 * b + 2 * i, G0 + 10 * b + 2 * i + 1, L_XN + b * 2560 + i * 512))
    e('v_bfe_u32 v%d, v1, 3, 1' % T)
    e('v_mul_u32_u24 v%d, 2560, v%d' % (T, T))
    e('v_lshrrev_b32 v%d, 4, v1' % (T + 1))
    e('v_mul_u32_u24 v%d, 80, v%d' % (T + 1, T + 1))
    e('s_lshl_b32 s38, s36, 2')
    e('v_add3_u32 v%d, v%d, v%d, s38' % (T, T, T + 1))
    e('s_waitcnt lgkmcnt(0)')
    for i in range(5):
        e('ds_read_b128 v[%d:%d], v%d offset:%d' % (F0 + 4 * i, F0 + 4 * i + 3, T, L_XN + 16 * i))
    A1, A2 = 28, 32
    for r in range(8): e('v_mov_b32 v%d, 0' % (A1 + r))
    e('s_lshl_b32 s38, s34, 9')
    e('v_lshl_add_u32 v%d, v1, 4, s38' % (T + 2))
    e('s_waitcnt lgkmcnt(0)')
    stamp(2)
    BB = 148
    for g in range(10):
        for k in range(2):
            for d in range(4): e('v_and_b32 v%d, v%d, v%d' % (BB + 8 * g + 4 * k + d, F0 + 10 * k + g, VMh + d))
    for g in range(10):
        e.wait_vm(('w', g))
        for k, A in enumerate((A1, A2)):
            bb = BB + 8 * g + 4 * k
            e('v_mfma_f32_16x16x32_bf16 v[%d:%d], v[%d:%d], v[%d:%d], v[%d:%d]' % (A, A + 3, WR + 4 * g, WR + 4 * g + 3, bb, bb + 3, A, A + 3))
    for r in range(4): e('v_permlane32_swap_b32 v%d, v%d' % (A2 + r, T + 4 + r))
    for r in range(4): e('v_add_f32 v%d, v%d, v%d' % (A1 + r, A1 + r, T + 4 + r))
    e('s_mov_b32 exec_hi, 0')
    e('global_store_dwordx4 v%d, v[%d:%d], %s %s' % (T + 2, A1, A1 + 3, P['ws'], hpol))
    e('s_mov_b64 exec, -1')
    stamp(3)
    e.wait_vm_n(0)
    stamp(4)
    e.label('L_harrive')
    e('v_mov_b32 v5, 0')
    e('v_mov_b32 v6, 1')
    e('s_mov_b64 exec, 1')
    e('ds_add_rtn_u32 v7, v5, v6 offset:%d' % L_CNT)
    e('s_waitcnt lgkmcnt(0)')
    e('s_mov_b64 exec, -1')
    e('v_readfirstlane_b32 s38, v7')
    e('s_cmp_lg_u32 s38, 3')
    e('s_cbranch_scc1 L_exit')
    e('s_lshl_b32 s39, s4, 3')
    e('s_mov_b32 s38, 1')
    e('s_atomic_add s38, %s, s39' % P['dbg'])
    e('s_mov_b32 s40, %d' % spin)
    e('v_lshrrev_b32 v2, 5, v1')
    e('v_mul_u32_u24 v2, 1536, v2')
    e('v_and_b32 v3, 31, v1')
    e('v_lshl_add_u32 v2, v3, 4, v2')
    e('v_bfe_u32 v3, v1, 4, 1')
    e('v_lshlrev_b32 v3, 5, v3')
    e('v_lshrrev_b32 v4, 5, v1')
    e('v_lshl_add_u32 v3, v4, 3, v3')
    e('v_and_b32 v4, 7, v1')
    e('v_add_u32 v3, v3, v4')
    e('v_bfe_u32 v4, v1, 3, 1')
    e('v_mul_u32_u24 v4, 192, v4')
    e('v_add_u32 v4, v4, v3')
    e('s_waitcnt lgkmcnt(0)')
    e.label('L_pollQ')
    e('s_load_dword s38, %s, s39 glc' % P['dbg'])
    e('s_waitcnt lgkmcnt(0)')
    e('s_cmp_ge_u32 s38, 8')
    e('s_cbranch_scc1 L_pollQ_done')
    e('s_sleep 2')
    e('s_sub_u32 s40, s40, 1')
    e('s_cmp_lg_u32 s40, 0')
    e('s_cbranch_scc1 L_pollQ')
    e.label('L_pollQ_done')
    stamp(5)
    G = 64
    def gather(sbase):
        e('v_add_u32 v5, %s, v2' % sbase)
        for i in range(1, 4): e('v_add_u32 v%d, %d, v5' % (5 + i, 3072 * i))
        for i in range(4):
            for n in range(3):
                e('global_load_dwordx4 v[%d:%d], v%d, %s offset:%d %s' % (G + 12 * i + 4 * n, G + 12 * i + 4 * n + 3, 5 + i, P['ws'], 512 * n, hpol))
        e.wait_vm_n(0)
        for r in range(12): e('v_add_f32 v%d, v%d, v%d' % (G + r, G + r, G + 12 + r))
        for r in range(12): e('v_add_f32 v%d, v%d, v%d' % (G + 24 + r, G + 24 + r, G + 36 + r))
        for r in range(12): e('v_add_f32 v%d, v%d, v%d' % (G + r, G + r, G + 24 + r))
        for r in range(0, 12, 2): e('v_permlane32_swap_b32 v%d, v%d' % (G + r, G + r + 1))
        for r in range(0, 12, 2): e('v_add_f32 v%d, v%d, v%d' % (G + r, G + r, G + r + 1))
    e('s_mul_i32 s38, s4, %d' % (8 * 1536))
    gather('s38')
    e('v_lshlrev_b32 v5, 1, v4')
    for r in range(0, 12, 2): e('v_cvt_pk_bf16_f32 v%d, v%d, v%d' % (G + r, G + r, G + r))
    for n in range(3):
        for k in range(2):
            e('ds_write_b16 v5, v%d offset:%d' % (G + 4 * n + 2 * k, L_Q + 128 * n + 32 * k))
    e('s_waitcnt lgkmcnt(0)')
    e('s_barrier')
    stamp(6)
    e('s_cmp_eq_u32 s6, 3')
    e('s_cbranch_scc1 L_exit')
    e('s_cmp_eq_u32 s6, 0')
    e('s_cbranch_scc1 L_exit')
    e('v_and_b32 v5, 31, v1')
    e('v_lshlrev_b32 v5, 3, v5')
    e('s_mov_b32 s40, %d' % spin)
    e.label('L_pollAll')
    e('global_load_dword v6, v5, %s %s' % (P['dbg'], hpol))
    e.wait_vm_n(0)
    e('v_cmp_gt_u32 vcc, 8, v6')
    e('s_cbranch_vccz L_pollAll_done')
    e('s_sleep 8')
    e('s_sub_u32 s40, s40, 1')
    e('s_cmp_lg_u32 s40, 0')
    e('s_cbranch_scc1 L_pollAll')
    e.label('L_pollAll_done')
    e('s_cmp_eq_u32 s6, 2')
    e('s_cbranch_scc1 L_exit')
    e('s_mul_i32 s38, s25, 384')
    e('v_lshl_add_u32 v9, v3, 1, s38')
    for n in range(3):
        for k in range(2):
            e('global_load_ushort v%d, v9, %s offset:%d' % (10 + 2 * n + k, P['b1'], 128 * n + 32 * k))
    e('s_mul_i32 s38, s25, %d' % (8 * 1536))
    e('s_add_u32 s38, s38, %d' % (768 * 512))
    gather('s38')
    for r in range(6): rnd(G + 2 * r)
    for r in range(6): e('v_lshlrev_b32 v%d, 16, v%d' % (10 + r, 10 + r))
    for r in range(6): e('v_add_f32 v%d, v%d, v%d' % (G + 2 * r, G + 2 * r, 10 + r))
    for r in range(6): rnd(G + 2 * r)
    for r in range(6):
        e('v_cmp_lt_f32 vcc, 0, v%d' % (G + 2 * r))
        e('v_cndmask_b32 v%d, 0, v%d, vcc' % (G + 2 * r, G + 2 * r))
    for r in range(6): e('v_mul_f32 v%d, v%d, v%d' % (G + 2 * r, G + 2 * r, G + 2 * r))
    for r in range(6): e('v_cvt_pk_bf16_f32 v%d, v%d, v%d' % (G + 2 * r, G + 2 * r, G + 2 * r))
    e('v_lshlrev_b32 v5, 2, v4')
    for n in range(3):
        for k in range(2):
            e('ds_write_b32 v5, v%d offset:%d' % (G + 4 * n + 2 * k, L_OD + 256 * n + 64 * k))
    e('s_waitcnt lgkmcnt(0)')
    stamp(7)
    e.label('L_exit')
    dump_stamps()
    e.label('L_end')
    body = e.text()
    txt = HEAD + '; @launch grid=(256,1,1) block=(512,1,1) lds=%d\n' % (lds or LDS_BYTES)
    txt += '.amdgcn_target "amdgcn-amd-amdhsa--gfx950"\n.text\n.globl %s_kernel\n.p2align 8\n.type %s_kernel,@function\n%s_kernel:\n' % (NAME, NAME, NAME)
    txt += body + '    s_endpgm\n'
    txt += '''.section .rodata,"a"
.p2align 6
.amdhsa_kernel %s_kernel
  .amdhsa_next_free_vgpr 256
  .amdhsa_next_free_sgpr 96
  .amdhsa_accum_offset 256
  .amdhsa_group_segment_fixed_size 0
  .amdhsa_kernarg_size 104
  .amdhsa_user_sgpr_count 2
  .amdhsa_user_sgpr_kernarg_segment_ptr 1
  .amdhsa_system_sgpr_workgroup_id_x 1
  .amdhsa_float_denorm_mode_32 3
.end_amdhsa_kernel
''' % NAME
    return txt

if __name__ == '__main__':
    kw = eval('dict(%s)' % (sys.argv[2] if len(sys.argv) > 2 else ''))
    open(sys.argv[1], 'w').write(gen(**kw))
```

```python
import sys, os
sys.path.insert(0, os.path.dirname(os.path.abspath(__file__)))
from emit import Emitter
NAME = 'recurrent_scan__gqa_block_cached__dense_activation_squared_relu__decode'

HEAD = open('cdna_kernels/%s.s.ref' % NAME).read().split('; Override launch')[0] if os.path.exists('cdna_kernels/%s.s.ref' % NAME) else ''

QP = 0
OA = 1 << 20
OB = 2 << 20
EP = 3 << 20
TS = 16 << 20
NMSG = 56
L_Q = 64
L_STS = 896
L_OD = 1024
L_XN = 3072
L_ST = 8192
L_YP = 21504
LDS_BYTES = 26624

KVB = 2 * 32 * 8192 * 384
LOG2E = 0x3fb8aa3b
SCALE = 0x3d93cd3a

def gen(D=6, stamps=False, spin=2000000, hpol='sc1', lds=None, catch=6, PRE=48, burst=None, wdelay=0, prio=0):
    if burst is None: burst = D
    e = Emitter()
    P = dict(x='s[64:65]', K='s[66:67]', V='s[68:69]', wq='s[70:71]', wo='s[72:73]', w1='s[76:77]', b1='s[78:79]',
             w2='s[80:81]', b2='s[82:83]', out='s[84:85]', dbg='s[86:87]', ws='s[88:89]')
    def stamp(k):
        if not stamps: return
        e('s_memrealtime s[92:93]')
        e('s_waitcnt lgkmcnt(0)')
        e('v_writelane_b32 v63, s92, %d' % k)
    def dump_stamps():
        if not stamps: return
        e('s_mov_b64 exec, -1')
        e('s_lshl_b32 s92, s2, 3')
        e('s_add_u32 s92, s92, s3')
        e('s_lshl_b32 s92, s92, 8')
        e('s_add_u32 s92, s92, %d' % TS)
        e('v_lshlrev_b32 v62, 2, v1')
        e('v_add_u32 v62, s92, v62')
        e('global_store_dword v62, v63, %s' % P['ws'])
        e('s_waitcnt vmcnt(0)')
    def masks(m0, t0):
        e('v_and_b32 v%d, 1, v1' % t0)
        e('v_lshlrev_b32 v%d, 4, v%d' % (t0, t0))
        e('v_mov_b32 v%d, 0xffff' % (t0 + 1))
        e('v_lshlrev_b32 v%d, v%d, v%d' % (t0, t0, t0 + 1))
        e('v_bfe_u32 v%d, v1, 1, 2' % (t0 + 1))
        for d in range(4):
            e('v_cmp_eq_u32 vcc, %d, v%d' % (d, t0 + 1))
            e('v_cndmask_b32 v%d, 0, v%d, vcc' % (m0 + d, t0))
    def allred8(op, regs, tmps):
        for r in regs: e('%s_dpp v%d, v%d, v%d row_ror:8 row_mask:0xf bank_mask:0xf' % (op, r, r, r))
        for sw in ('v_permlane16_swap_b32', 'v_permlane32_swap_b32'):
            for r, t in zip(regs, tmps): e('v_mov_b32 v%d, v%d' % (t, r))
            for r, t in zip(regs, tmps): e('%s v%d, v%d' % (sw, r, t))
            for r, t in zip(regs, tmps): e('%s v%d, v%d, v%d' % (op, r, r, t))
    def allred_lo8(op, regs):
        for ctl in ('quad_perm:[1,0,3,2]', 'quad_perm:[2,3,0,1]', 'row_half_mirror'):
            for r in regs: e('%s_dpp v%d, v%d, v%d %s row_mask:0xf bank_mask:0xf' % (op, r, r, r, ctl))
    def redscat4(quads):
        for q in quads:
            e('v_permlane32_swap_b32 v%d, v%d' % (q, q + 2))
            e('v_permlane32_swap_b32 v%d, v%d' % (q + 1, q + 3))
        for q in quads:
            e('v_add_f32 v%d, v%d, v%d' % (q, q, q + 2))
            e('v_add_f32 v%d, v%d, v%d' % (q + 1, q + 1, q + 3))
        for q in quads: e('v_permlane16_swap_b32 v%d, v%d' % (q, q + 1))
        for q in quads: e('v_add_f32 v%d, v%d, v%d' % (q, q, q + 1))
        for q in quads: e('v_add_f32_dpp v%d, v%d, v%d row_ror:8 row_mask:0xf bank_mask:0xf' % (q, q, q))
    def rnd(r):
        e('v_cvt_pk_bf16_f32 v%d, v%d, v%d' % (r, r, r))
        e('v_and_b32 v%d, 0xffff0000, v%d' % (r, r))
    def fold(op, t, regs):
        rs = list(regs)
        if len(rs) == 1: e('v_mov_b32 v%d, v%d' % (t, rs[0])); return
        if len(rs) == 2: e('%s_u32 v%d, v%d, v%d' % (op, t, rs[0], rs[1])); return
        e('%s3_u32 v%d, v%d, v%d, v%d' % (op, t, rs[0], rs[1], rs[2])); rs = rs[3:]
        while len(rs) >= 2:
            e('%s3_u32 v%d, v%d, v%d, v%d' % (op, t, t, rs[0], rs[1])); rs = rs[2:]
        if rs: e('%s_u32 v%d, v%d, v%d' % (op, t, t, rs[0]))
    def poll(name, loads, regs, t, tagged=False, sleep=1):
        e('s_mov_b32 s40, %d' % spin)
        e.label(name)
        for l in loads: e(l)
        e.wait_vm_n(0)
        fold('v_max', t, regs)
        if tagged:
            fold('v_min', t + 1, regs)
            e('v_cmp_ne_u32 vcc, s47, v%d' % t)
            e('v_cmp_ne_u32 s[42:43], s47, v%d' % (t + 1))
            e('s_or_b64 vcc, vcc, s[42:43]')
        else:
            e('v_cmp_eq_u32 vcc, -1, v%d' % t)
        e('s_cbranch_vccz %s_done' % name)
        e('s_mov_b64 exec, vcc')
        e('s_sleep %d' % sleep)
        e('s_sub_u32 s40, s40, 1')
        e('s_cmp_lg_u32 s40, 0')
        e('s_cbranch_scc1 %s' % name)
        e.label(name + '_done')
        e('s_mov_b64 exec, -1')

    if stamps: e('s_memrealtime s[90:91]')
    e('s_cmp_ge_u32 s2, 256')
    e('s_cbranch_scc1 L_end')
    e('s_load_dwordx16 s[64:79], s[0:1], 0')
    e('s_load_dwordx8 s[80:87], s[0:1], 64')
    e('s_load_dwordx2 s[88:89], s[0:1], 96')
    e('v_lshrrev_b32 v1, 6, v0')
    e('v_readfirstlane_b32 s3, v1')
    e('v_and_b32 v1, 63, v0')
    e('s_lshr_b32 s4, s2, 3')
    e('s_and_b32 s5, s2, 7')
    if stamps:
        e('v_mov_b32 v63, 0')
    e('s_cmp_ge_u32 s3, 4')
    e('s_cbranch_scc1 L_helper')

    VQ, VM, VACC, VMX, VMT, VL, VS, VSA, VB, VT = 4, 16, 20, 32, 33, 34, 36, 40, 40, 56
    RING = 64
    e('v_lshrrev_b32 v2, 3, v1')
    e('v_mul_u32_u24 v2, 384, v2')
    e('v_and_b32 v3, 7, v1')
    e('v_lshl_add_u32 v2, v3, 4, v2')
    e('v_add_u32 v3, 6144, v2')
    e('s_mul_i32 s30, s4, 3145728')
    e('s_mul_i32 s31, s5, 393216')
    e('s_add_u32 s30, s30, s31')
    e('s_mul_i32 s31, s3, 12288')
    e('s_add_u32 s30, s30, s31')
    e('s_add_u32 s31, s30, 49152')
    e('s_add_u32 s32, s30, %d' % (2 * 49152))
    e('s_add_u32 s33, s30, %d' % (3 * 49152))
    e('s_mov_b32 s10, %d' % KVB); e('s_mov_b32 s11, 0x20000')
    e('s_mov_b32 s14, %d' % KVB); e('s_mov_b32 s15, 0x20000')
    e('s_waitcnt lgkmcnt(0)')
    e('s_mov_b32 s8, s66'); e('s_mov_b32 s9, s67')
    e('s_mov_b32 s12, s68'); e('s_mov_b32 s13, s69')
    def kvload(i, buf, soff, tag):
        srd = 's[8:11]' if i < 12 else 's[12:15]'
        g, n = divmod(i % 12, 3)
        r = RING + 4 * buf
        e('buffer_load_dwordx4 v[%d:%d], v%d, %s, %s offen offset:%d nt' % (r, r + 3, 2 + g // 2, srd, soff, (g % 2) * 3072 + n * 128), tag=tag)
    def sreg_of_step(s): return 's%d' % (30 + s)
    def issue_abs(k):
        s, i = divmod(k, 24)
        buf = k if k < 48 else i
        kvload(i, buf, sreg_of_step(s), ('kv', k))
    for k in range(D): issue_abs(k)
    if stamps: e('v_writelane_b32 v63, s90, 0')
    masks(VM, VT)
    e('s_mov_b32 s34, 0x%x' % SCALE)
    e('s_mov_b32 s35, 0x%x' % LOG2E)
    def reset_acc():
        for r in range(12): e('v_mov_b32 v%d, 0' % (VACC + r))
        e('v_mov_b32 v%d, 0xff800000' % VMX)
        e('v_mov_b32 v%d, 0xff800000' % VMT)
        e('v_mov_b32 v%d, 0' % VL)
    reset_acc()
    for k in range(D, PRE):
        e.wait_vm_n(D - 1)
        if k == D: stamp(7)
        issue_abs(k)
    stamp(1)
    e('s_barrier')
    stamp(2)
    def load_q(b):
        e('v_and_b32 v%d, 7, v1' % VT)
        e('v_lshlrev_b32 v%d, 4, v%d' % (VT, VT))
        for n in range(3):
            e('ds_read_b128 v[%d:%d], v%d offset:%d' % (VQ + 4 * n, VQ + 4 * n + 3, VT, L_Q + b * 384 + n * 128))
        e('s_waitcnt lgkmcnt(0)')
    load_q(0)
    lab = [0]
    def step(bufbase, pre, post, last=False):
        for i in range(12):
            g, n = divmod(i, 3)
            pre(i)
            r = RING + 4 * (bufbase + i)
            for d in range(4):
                acc = VSA + 2 * g + (d & 1)
                c = '0' if (n == 0 and d < 2) else 'v%d' % acc
                e('v_dot2_f32_bf16 v%d, v%d, v%d, %s' % (acc, r + d, VQ + 4 * n + d, c))
            post(i)
        S = [VS + g for g in range(4)]
        for g in range(4): e('v_add_f32 v%d, v%d, v%d' % (S[g], VSA + 2 * g, VSA + 2 * g + 1))
        allred_lo8('v_add_f32', S)
        def rnd4():
            e('v_cvt_pk_bf16_f32 v%d, v%d, v%d' % (VT, S[0], S[1]))
            e('v_cvt_pk_bf16_f32 v%d, v%d, v%d' % (VT + 1, S[2], S[3]))
            e('v_lshlrev_b32 v%d, 16, v%d' % (S[0], VT))
            e('v_and_b32 v%d, 0xffff0000, v%d' % (S[1], VT))
            e('v_lshlrev_b32 v%d, 16, v%d' % (S[2], VT + 1))
            e('v_and_b32 v%d, 0xffff0000, v%d' % (S[3], VT + 1))
        rnd4()
        for g in range(4): e('v_mul_f32 v%d, s34, v%d' % (S[g], S[g]))
        rnd4()
        e('v_max3_f32 v%d, v%d, v%d, v%d' % (VT, S[0], S[1], S[2]))
        e('v_max_f32 v%d, v%d, v%d' % (VT, VT, S[3]))
        e('v_cmp_gt_f32 vcc, v%d, v%d' % (VT, VMX))
        lab[0] += 1
        sk = 'L_nomax%d' % lab[0]
        e('s_cbranch_vccz %s' % sk)
        e('v_max_f32 v%d, v%d, v%d' % (VMX, VT, VMX))
        allred8('v_max_f32', [VMX], [VT + 1])
        e('v_mul_f32 v%d, s35, v%d' % (VT, VMX))
        e('v_sub_f32 v%d, v%d, v%d' % (VT + 1, VMT, VT))
        e('v_exp_f32 v%d, v%d' % (VT + 1, VT + 1))
        e('v_mov_b32 v%d, v%d' % (VMT, VT))
        for r in range(12): e('v_mul_f32 v%d, v%d, v%d' % (VACC + r, VACC + r, VT + 1))
        e('v_mul_f32 v%d, v%d, v%d' % (VL, VL, VT + 1))
        e.label(sk)
        for g in range(4): e('v_fma_f32 v%d, v%d, s35, -v%d' % (S[g], S[g], VMT))
        for g in range(4): e('v_exp_f32 v%d, v%d' % (S[g], S[g]))
        for g in range(4): e('v_cvt_pk_bf16_f32 v%d, v%d, v%d' % (VT + g, S[g], S[g]))
        for g in range(4):
            for d in range(4): e('v_and_b32 v%d, v%d, v%d' % (VB + 4 * g + d, VT + g, VM + d))
        e('v_add_f32 v%d, v%d, v%d' % (S[0], S[0], S[1]))
        e('v_add_f32 v%d, v%d, v%d' % (S[2], S[2], S[3]))
        e('v_add_f32 v%d, v%d, v%d' % (VL, VL, S[0]))
        e('v_add_f32 v%d, v%d, v%d' % (VL, VL, S[2]))
        if last: stash_stats(1)
        for i in range(12, 24):
            g, n = divmod(i - 12, 3)
            pre(i)
            r = RING + 4 * (bufbase + i)
            e('v_mfma_f32_16x16x32_bf16 v[%d:%d], v[%d:%d], v[%d:%d], v[%d:%d]' % (
                VACC + 4 * n, VACC + 4 * n + 3, r, r + 3, VB + 4 * g, VB + 4 * g + 3, VACC + 4 * n, VACC + 4 * n + 3))
            post(i)
    def stash_stats(b):
        allred8('v_add_f32', [VL], [VT])
        e('v_mov_b32 v%d, v%d' % (VT, VMT))
        e('v_mov_b32 v%d, v%d' % (VT + 1, VL))
        e('s_lshl_b32 s38, s3, 3')
        e('v_mov_b32 v%d, s38' % (VT + 2))
        e('s_mov_b64 exec, 1')
        e('ds_write_b64 v%d, v[%d:%d] offset:%d' % (VT + 2, VT, VT + 1, L_STS + b * 32))
        e('s_mov_b64 exec, -1')
        e('v_lshrrev_b32 v%d, 5, v1' % (VT + 3))
        e('v_mul_u32_u24 v%d, 768, v%d' % (VT + 3, VT + 3))
        e('v_bfe_u32 v%d, v1, 4, 1' % (VT + 4))
        e('v_lshl_add_u32 v%d, v%d, 7, v%d' % (VT + 3, VT + 4, VT + 3))
        e('v_and_b32 v%d, 7, v1' % (VT + 4))
        e('v_lshl_add_u32 v%d, v%d, 4, v%d' % (VT + 3, VT + 4, VT + 3))
        e('s_mul_i32 s38, s3, 1536')
        e('v_add_u32 v%d, s38, v%d' % (VT + 3, VT + 3))
        if b == 1:
            e('s_mul_i32 s38, s3, 6144')
            e('v_lshl_add_u32 v35, v1, 4, s38')
            e('s_lshl_b32 s38, s3, 5')
            e('v_mov_b32 v%d, s38' % (VT + 4))
            e('s_lshl_b32 s38, s2, 1')
            e('s_add_u32 s38, s38, s3')
            e('s_lshl_b32 s38, s38, 10')
            e('s_add_u32 s38, s38, %d' % OA)
            e('v_lshl_add_u32 v%d, v1, 4, s38' % (VT + 5))
    def stash_acc(b):
        e('s_mov_b32 exec_lo, 0x00ff00ff')
        e('s_mov_b32 exec_hi, 0xff00ff00')
        for n in range(3):
            e('ds_write_b128 v%d, v[%d:%d] offset:%d' % (VT + 3, VACC + 4 * n, VACC + 4 * n + 3, L_ST + b * 6144 + n * 256))
        e('s_mov_b64 exec, -1')

    nxt = [PRE]
    def mk(base):
        def pre(i):
            k = base + i
            e.wait_vm(('kv', k))
            while nxt[0] <= k + D and (nxt[0] < 48 or nxt[0] - 48 < k):
                issue_abs(nxt[0]); nxt[0] += 1
        def post(i):
            k = base + i
            if k < PRE:
                want = PRE + min(k + 1, burst + max(0, (k + 1 - burst) // catch))
                while nxt[0] < want and (nxt[0] < 48 or nxt[0] - 48 <= k):
                    issue_abs(nxt[0]); nxt[0] += 1
        return pre, post
    for s in range(3):
        pre, post = mk(24 * s)
        step(24 * s if s < 2 else 0, pre, post)
    assert nxt[0] == 72 + D
    stamp(3)
    e('s_mov_b32 s30, s33')
    e('s_mov_b32 s39, 3')
    e.vq = [('lp', i) for i in range(D)]
    e.label('L_loop')
    e('s_cmp_lg_u32 s39, 8')
    e('s_cbranch_scc1 L_noswitch')
    stash_stats(0)
    stash_acc(0)
    load_q(1)
    reset_acc()
    stamp(4)
    e.label('L_noswitch')
    e('s_cmp_eq_u32 s39, 7')
    e('s_cselect_b32 s31, %d, %d' % (KVB // 2 - 7 * 49152, 0))
    e('s_cselect_b32 s38, 0, 49152')
    e('s_add_u32 s31, s31, s38')
    e('s_add_u32 s31, s31, s30')
    def pre(i):
        e.wait_vm(('lp', i))
        k = i + D
        if k < 24: kvload(k, k, 's30', ('lp', k))
        else: kvload(k - 24, k - 24, 's31', ('lp', k - 24))
    step(0, pre, lambda i: None)
    e('s_mov_b32 s30, s31')
    e('s_add_u32 s39, s39, 1')
    e('s_cmp_lt_u32 s39, 15')
    e('s_cbranch_scc1 L_loop')
    assert e.vq == [('lp', i) for i in range(D)]
    def pre(i):
        e.wait_vm(('lp', i))
        k = i + D
        if k < 24: kvload(k, k, 's30', ('lp', k))
    step(0, pre, lambda i: None, last=True)
    stamp(5)
    stash_acc(1)
    e('s_waitcnt lgkmcnt(0)')
    e('s_barrier')
    X = RING + 96
    e('s_cmp_ge_u32 s3, 2')
    e('s_cbranch_scc1 L_exit')
    e('ds_read_b128 v[%d:%d], v%d offset:%d' % (X + 32, X + 35, VT + 4, L_STS))
    e('ds_read_b128 v[%d:%d], v%d offset:%d' % (X + 36, X + 39, VT + 4, L_STS + 16))
    for k in range(8):
        e('ds_read_b128 v[%d:%d], v35 offset:%d' % (X + 4 * k, X + 4 * k + 3, L_ST + 768 * k))
    e('s_waitcnt lgkmcnt(8)')
    MT = [X + 32, X + 34, X + 36, X + 38]; LL = [X + 33, X + 35, X + 37, X + 39]
    e('v_max3_f32 v%d, v%d, v%d, v%d' % (X + 40, MT[0], MT[1], MT[2]))
    e('v_max_f32 v%d, v%d, v%d' % (X + 40, X + 40, MT[3]))
    for w in range(4): e('v_sub_f32 v%d, v%d, v%d' % (MT[w], MT[w], X + 40))
    for w in range(4): e('v_exp_f32 v%d, v%d' % (MT[w], MT[w]))
    e('v_mul_f32 v%d, v%d, v%d' % (X + 41, MT[0], LL[0]))
    for w in range(1, 4): e('v_fma_f32 v%d, v%d, v%d, v%d' % (X + 41, MT[w], LL[w], X + 41))
    e('s_waitcnt lgkmcnt(0)')
    for w in range(4):
        for r in range(4): e('v_add_f32 v%d, v%d, v%d' % (X + 8 * w + r, X + 8 * w + r, X + 8 * w + 4 + r))
    for r in range(4): e('v_mul_f32 v%d, v%d, v%d' % (X + r, X + r, MT[0]))
    for w in range(1, 4):
        for r in range(4): e('v_fma_f32 v%d, v%d, v%d, v%d' % (X + r, X + 8 * w + r, MT[w], X + r))
    e('s_mov_b32 exec_lo, 0')
    e('s_mov_b32 exec_hi, 0x10000')
    e('v_mov_b32 v%d, v%d' % (X, X + 40))
    e('v_mov_b32 v%d, v%d' % (X + 1, X + 41))
    e('v_mov_b32 v%d, 0' % (X + 2))
    e('v_mov_b32 v%d, 0' % (X + 3))
    e('s_mov_b32 exec_lo, -1')
    e('s_mov_b32 exec_hi, 0x1ffff')
    for r in range(4): e('v_min_u32 v%d, -2, v%d' % (X + r, X + r))
    e('global_store_dwordx4 v%d, v[%d:%d], %s %s' % (VT + 5, X, X + 3, P['ws'], hpol))
    stamp(6)
    e('s_branch L_exit')

    e.label('L_helper')
    e.vq = []
    XR, WR, VMh, T = 8, 64, 24, 40
    if prio: e('s_setprio %d' % prio)
    e('s_sub_u32 s29, s3, 4')
    e('v_lshlrev_b32 v2, 2, v1')
    e('s_mul_i32 s30, s2, 2731')
    e('s_lshr_b32 s30, s30, 16')
    e('s_mul_i32 s31, s30, 24')
    e('s_sub_u32 s31, s2, s31')
    e('s_mul_i32 s32, s31, 21846')
    e('s_lshr_b32 s32, s32, 16')
    e('s_mul_i32 s33, s32, 3')
    e('s_sub_u32 s33, s31, s33')
    e('s_mul_i32 s34, s2, 3')
    e('s_add_u32 s34, s34, s29')
    e('s_add_u32 s35, s2, 768')
    e('s_mov_b32 s46, 3072')
    e('s_cmp_lt_u32 s29, 3')
    e('s_cselect_b32 s30, s4, s30')
    e('s_cselect_b32 s32, s5, s32')
    e('s_cselect_b32 s33, s29, s33')
    e('s_cselect_b32 s34, s34, s35')
    e('s_cselect_b32 s35, 12288, s46')
    e('s_cselect_b32 s18, %d, %d' % (640 * 12288, 0))
    e('s_cselect_b32 s36, 0, %d' % (640 * 3072))
    e('s_add_u32 s18, s18, s36')
    e('s_mov_b32 s19, 0x20000')
    e('s_mul_i32 s36, s32, 80')
    e('s_mul_i32 s37, s36, s35')
    e('s_mul_i32 s38, s30, 384')
    e('s_add_u32 s37, s37, s38')
    e('s_lshl_b32 s38, s33, 7')
    e('s_add_u32 s37, s37, s38')
    e('s_mul_i32 s38, s35, 10')
    e('v_lshrrev_b32 v3, 3, v1')
    e('v_mul_lo_u32 v3, v3, s38')
    e('v_and_b32 v4, 7, v1')
    e('v_lshl_add_u32 v3, v4, 4, v3')
    e('s_mov_b32 s48, %d' % EP)
    e('s_waitcnt lgkmcnt(0)')
    e('s_load_dword s47, %s, s48' % P['ws'])
    e('s_cmp_lt_u32 s29, 3')
    e('s_cselect_b32 s16, s70, s76')
    e('s_cselect_b32 s17, s71, s77')
    e('s_cselect_b32 s45, 0, s2')
    e('s_cmp_lt_u32 s45, 192')
    e('s_cselect_b32 s45, 1, 0')
    e('s_cbranch_scc0 L_hskip1')
    for b in range(2):
        for i in range(5):
            e('global_load_dword v%d, v2, %s offset:%d' % (XR + 5 * b + i, P['x'], b * 1280 + i * 256), tag='x')
    for g in range(10):
        e('buffer_load_dwordx4 v[%d:%d], v3, s[16:19], s37 offen nt' % (WR + 4 * g, WR + 4 * g + 3), tag=('w', g))
        if g < 9: e('s_add_u32 s37, s37, s35')
    e.label('L_hskip1')
    if stamps: e('v_writelane_b32 v63, s90, 0')
    stamp(8)
    e('s_add_u32 s26, s4, 32')
    e('s_cmp_eq_u32 s5, 5')
    e('s_cselect_b32 s26, s4, s26')
    e('s_mul_i32 s25, s26, 13108')
    e('s_lshr_b32 s25, s25, 16')
    e('s_mul_i32 s24, s25, 5')
    e('s_sub_u32 s24, s26, s24')
    e('s_mul_i32 s27, s25, 3')
    e('s_add_u32 s27, s27, 32')
    e('s_cmp_lt_u32 s26, 40')
    e('s_cselect_b32 s6, 1, 3')
    e('s_cmp_lt_u32 s4, 10')
    e('s_cselect_b32 s28, 2, 3')
    e('s_cmp_eq_u32 s5, 7')
    e('s_cselect_b32 s6, s28, s6')
    e('s_cmp_lt_u32 s5, 5')
    e('s_cselect_b32 s6, 0, s6')
    e('s_cselect_b32 s24, s5, s24')
    e('s_cselect_b32 s27, s4, s27')
    e('s_mul_i32 s7, s24, %d' % NMSG)
    e('s_add_u32 s7, s7, s27')
    e('s_lshl_b32 s7, s7, 10')
    e('s_add_u32 s7, s7, %d' % OB)
    masks(VMh, T + 6)
    e('s_waitcnt lgkmcnt(0)')
    e('s_mul_i32 s47, s47, 1664525')
    e('s_add_u32 s47, s47, 1013904223')
    e('s_cmp_eq_u32 s45, 0')
    e('s_cbranch_scc1 L_hbar')
    for r in range(4): e('v_mov_b32 v%d, -1' % (T + r))
    e('s_lshl_b32 s38, s2, 1')
    e('s_add_u32 s38, s38, s29')
    e('s_lshl_b32 s38, s38, 10')
    e('s_add_u32 s38, s38, %d' % OA)
    e('s_cmp_eq_u32 s29, 2')
    e('s_cselect_b32 s38, s7, s38')
    e('s_cselect_b32 s39, s6, 0')
    e('s_cselect_b32 s41, -1, 0x1ffff')
    e('v_lshl_add_u32 v%d, v1, 4, s38' % (T + 4))
    e('s_cmp_eq_u32 s29, 3')
    e('s_cselect_b32 s39, 2, s39')
    e('s_cmp_ge_u32 s39, 2')
    e('s_cbranch_scc1 L_noclear')
    e('s_mov_b32 exec_hi, s41')
    vq_save = list(e.vq)
    e('global_store_dwordx4 v%d, v[%d:%d], %s %s' % (T + 4, T, T + 3, P['ws'], hpol))
    e('s_cmp_eq_u32 s39, 0')
    e('s_cbranch_scc1 L_noclear')
    e('global_store_dwordx4 v%d, v[%d:%d], %s offset:1024 %s' % (T + 4, T, T + 3, P['ws'], hpol))
    e('global_store_dwordx4 v%d, v[%d:%d], %s offset:2048 %s' % (T + 4, T, T + 3, P['ws'], hpol))
    e.vq = vq_save
    e.label('L_noclear')
    e('s_mov_b64 exec, -1')
    F0 = 108
    e.wait_vm('x')
    stamp(1)
    for k in range(10):
        e('v_lshlrev_b32 v%d, 16, v%d' % (F0 + 2 * k, XR + k))
        e('v_and_b32 v%d, 0xffff0000, v%d' % (F0 + 2 * k + 1, XR + k))
    SM = [T + 8, T + 9]; TM = [T + 10, T + 11]
    for b in range(2):
        e('v_add_f32 v%d, v%d, v%d' % (SM[b], F0 + 10 * b, F0 + 10 * b + 1))
    for k in range(2, 10):
        for b in range(2): e('v_add_f32 v%d, v%d, v%d' % (SM[b], SM[b], F0 + 10 * b + k))
    allred_lo8('v_add_f32', SM)
    allred8('v_add_f32', SM, TM)
    e('s_mov_b32 s38, 0x3acccccd')
    for b in range(2): e('v_mul_f32 v%d, s38, v%d' % (SM[b], SM[b]))
    VR = [T + 12, T + 13]
    for k in range(10):
        for b in range(2): e('v_sub_f32 v%d, v%d, v%d' % (TM[b], F0 + 10 * b + k, SM[b]))
        for b in range(2):
            if k == 0: e('v_mul_f32 v%d, v%d, v%d' % (VR[b], TM[b], TM[b]))
            else: e('v_fma_f32 v%d, v%d, v%d, v%d' % (VR[b], TM[b], TM[b], VR[b]))
    allred_lo8('v_add_f32', VR)
    allred8('v_add_f32', VR, TM)
    for b in range(2): e('v_mul_f32 v%d, s38, v%d' % (VR[b], VR[b]))
    for b in range(2): rnd(SM[b])
    for b in range(2): rnd(VR[b])
    for b in range(2): e('v_add_f32 v%d, 0x3727c5ac, v%d' % (VR[b], VR[b]))
    for b in range(2): rnd(VR[b])
    for b in range(2): e('v_sqrt_f32 v%d, v%d' % (VR[b], VR[b]))
    for b in range(2): rnd(VR[b])
    for b in range(2): e('v_rcp_f32 v%d, v%d' % (TM[b], VR[b]))
    for b in range(2):
        for k in range(10): e('v_sub_f32 v%d, v%d, v%d' % (F0 + 10 * b + k, F0 + 10 * b + k, SM[b]))
    for k in range(20): rnd(F0 + k)
    G0 = 128
    for b in range(2):
        for k in range(10): e('v_mul_f32 v%d, v%d, v%d' % (G0 + 10 * b + k, F0 + 10 * b + k, TM[b]))
    for b in range(2):
        for k in range(10): e('v_fma_f32 v%d, -v%d, v%d, v%d' % (F0 + 10 * b + k, G0 + 10 * b + k, VR[b], F0 + 10 * b + k))
    for b in range(2):
        for k in range(10): e('v_fma_f32 v%d, v%d, v%d, v%d' % (G0 + 10 * b + k, F0 + 10 * b + k, TM[b], G0 + 10 * b + k))
    for k in range(20): e('v_cvt_pk_bf16_f32 v%d, v%d, v%d' % (G0 + k, G0 + k, G0 + k))
    e('v_lshlrev_b32 v%d, 3, v1' % (T + 8))
    for b in range(2):
        for i in range(5):
            e('ds_write_b64 v%d, v[%d:%d] offset:%d' % (T + 8, G0 + 10 * b + 2 * i, G0 + 10 * b + 2 * i + 1, L_XN + b * 2560 + i * 512))
    e('v_bfe_u32 v%d, v1, 3, 1' % (T + 8))
    e('v_mul_u32_u24 v%d, 2560, v%d' % (T + 8, T + 8))
    e('v_lshrrev_b32 v%d, 4, v1' % (T + 9))
    e('v_mul_u32_u24 v%d, 80, v%d' % (T + 9, T + 9))
    e('s_lshl_b32 s38, s36, 2')
    e('v_add3_u32 v%d, v%d, v%d, s38' % (T + 8, T + 8, T + 9))
    e('s_waitcnt lgkmcnt(0)')
    for i in range(5):
        e('ds_read_b128 v[%d:%d], v%d offset:%d' % (F0 + 4 * i, F0 + 4 * i + 3, T + 8, L_XN + 16 * i))
    A1, A2 = 28, 32
    for r in range(8): e('v_mov_b32 v%d, 0' % (A1 + r))
    e('s_lshl_b32 s38, s34, 10')
    e('v_lshl_add_u32 v%d, v1, 4, s38' % (T + 10))
    e('v_mov_b32 v%d, s47' % (T + 13))
    e('v_mov_b32 v%d, s47' % (T + 15))
    e('s_waitcnt lgkmcnt(0)')
    stamp(2)
    BB = 148
    for g in range(10):
        for k in range(2):
            for d in range(4): e('v_and_b32 v%d, v%d, v%d' % (BB + 8 * g + 4 * k + d, F0 + 10 * k + g, VMh + d))
    for g in range(10):
        e.wait_vm(('w', g))
        for k, A in enumerate((A1, A2)):
            bb = BB + 8 * g + 4 * k
            e('v_mfma_f32_16x16x32_bf16 v[%d:%d], v[%d:%d], v[%d:%d], v[%d:%d]' % (A, A + 3, WR + 4 * g, WR + 4 * g + 3, bb, bb + 3, A, A + 3))
    e('s_mov_b32 exec_lo, 0')
    for r in range(4): e('v_mov_b32 v%d, v%d' % (A1 + r, A2 + r))
    e('s_mov_b32 exec_lo, -1')
    e('v_permlane32_swap_b32 v%d, v%d' % (A1, A1 + 2))
    e('v_permlane32_swap_b32 v%d, v%d' % (A1 + 1, A1 + 3))
    e('v_add_f32 v%d, v%d, v%d' % (T + 12, A1, A1 + 2))
    e('v_add_f32 v%d, v%d, v%d' % (T + 14, A1 + 1, A1 + 3))
    e('s_waitcnt vmcnt(0)')
    e('global_store_dwordx4 v%d, v[%d:%d], %s %s' % (T + 10, T + 12, T + 15, P['ws'], hpol))
    stamp(3)
    e('s_cmp_eq_u32 s29, 3')
    e('s_cbranch_scc1 L_hbar')
    G = 64
    def gather(name, sbase):
        e('v_lshl_add_u32 v5, v1, 4, %s' % sbase)
        for i in range(1, 4): e('v_add_u32 v%d, %d, v5' % (5 + i, 6144 * i))
        loads = ['global_load_dwordx4 v[%d:%d], v%d, %s offset:%d %s' % (G + 4 * i, G + 4 * i + 3, 5 + i // 2, P['ws'], 3072 * (i % 2), hpol) for i in range(8)]
        poll(name, loads, [G + 2 * i + 1 for i in range(16)], T, tagged=True, sleep=2)
        for st in (16, 8, 4):
            for r in range(0, st, 2): e('v_add_f32 v%d, v%d, v%d' % (G + r, G + r, G + st + r))
    e('v_bfe_u32 v3, v1, 4, 1')
    e('v_lshlrev_b32 v3, 5, v3')
    e('v_lshrrev_b32 v4, 5, v1')
    e('v_lshl_add_u32 v3, v4, 4, v3')
    e('v_and_b32 v4, 7, v1')
    e('v_add_u32 v3, v3, v4')
    e('v_bfe_u32 v4, v1, 3, 1')
    e('v_mul_u32_u24 v10, 192, v4')
    e('v_add_u32 v10, v10, v3')
    e('s_lshl_b32 s38, s29, 7')
    e('v_lshl_add_u32 v10, v10, 1, s38')
    e('s_mul_i32 s38, s4, 24')
    e('s_add_u32 s38, s38, s29')
    e('s_lshl_b32 s38, s38, 10')
    gather('L_pollQ', 's38')
    stamp(4)
    e('v_cvt_pk_bf16_f32 v%d, v%d, v%d' % (G, G, G + 2))
    e('ds_write_b16 v10, v%d offset:%d' % (G, L_Q))
    e('ds_write_b16_d16_hi v10, v%d offset:%d' % (G, L_Q + 16))
    e('s_waitcnt lgkmcnt(0)')
    e.label('L_hbar')
    e('s_barrier')
    stamp(5)
    e('s_cmp_eq_u32 s6, 3')
    e('s_cbranch_scc1 L_exit')
    e('s_cmp_eq_u32 s6, 2')
    e('s_cbranch_scc1 L_reducer')
    e('s_cmp_eq_u32 s6, 1')
    e('s_cbranch_scc1 L_ffn2')

    WREG = 160
    if wdelay:
        for i in range(wdelay): e('s_sleep 127')
    e('s_mov_b32 s16, s72'); e('s_mov_b32 s17, s73')
    e('s_mov_b32 s18, %d' % (6144 * 1280))
    e('s_mul_i32 s36, s4, %d' % (192 * 1280))
    e('s_lshl_b32 s37, s24, 8')
    e('s_add_u32 s36, s36, s37')
    e('v_lshrrev_b32 v2, 4, v1')
    e('v_mul_u32_u24 v2, %d, v2' % (8 * 1280))
    e('v_and_b32 v3, 15, v1')
    e('v_lshl_add_u32 v2, v3, 4, v2')
    e('s_mul_i32 s37, s29, 12')
    e.vq = []
    for t in range(12):
        e('s_add_u32 s38, s37, %d' % t)
        e('s_lshr_b32 s39, s38, 3')
        e('s_lshl_b32 s39, s39, 5')
        e('s_and_b32 s38, s38, 7')
        e('s_add_u32 s38, s38, s39')
        e('s_mul_i32 s38, s38, 1280')
        e('s_add_u32 s38, s38, s36')
        if t >= 2: e.wait_vm_n(1)
        e('buffer_load_dwordx4 v[%d:%d], v2, s[16:19], s38 offen nt' % (WREG + 4 * t, WREG + 4 * t + 3))
    X = 112
    e('s_lshl_b32 s38, s4, 14')
    e('s_add_u32 s38, s38, %d' % OA)
    e('v_lshrrev_b32 v2, 3, v1')
    e('v_lshl_add_u32 v2, v2, 11, s38')
    e('v_and_b32 v3, 7, v1')
    e('s_mul_i32 s39, s29, 192')
    e('v_lshl_add_u32 v4, v3, 4, v2')
    e('v_add_u32 v4, s39, v4')
    e('v_add_u32 v6, %d, v4' % (1024 + 64))
    e('v_add_u32 v5, 128, v4')
    e('v_add_u32 v7, %d, v4' % (1024 - 64))
    e('v_cmp_gt_u32 vcc, 4, v3')
    e('v_cndmask_b32 v5, v7, v5, vcc')
    e('s_mov_b64 s[44:45], vcc')
    e('s_lshl_b32 s39, s29, 9')
    e('s_add_u32 s39, s39, %d' % L_OD)
    e('v_lshrrev_b32 v7, 4, v1')
    e('v_mul_u32_u24 v7, 96, v7')
    e('v_add_u32 v7, s39, v7')
    e('v_lshl_add_u32 v8, v3, 2, v7')
    e('v_bfe_u32 v9, v1, 3, 1')
    e('v_mul_u32_u24 v9, 48, v9')
    e('v_add_u32 v9, v9, v7')
    e('s_lshl_b32 s38, s29, 10')
    e('v_lshl_add_u32 v10, v1, 4, s38')
    e('v_lshl_add_u32 v11, v1, 4, s7')
    for r in range(4): e('v_mov_b32 v%d, 0' % (A1 + r))
    e.wait_vm_n(0)
    stamp(6)
    e('s_barrier')
    loads = ['global_load_dwordx4 v[%d:%d], v%d, %s %s' % (X + 4 * i, X + 4 * i + 3, 4 + i, P['ws'], hpol) for i in range(3)]
    loads.append('global_load_dwordx2 v[%d:%d], v2, %s offset:768 %s' % (X + 12, X + 13, P['ws'], hpol))
    loads.append('global_load_dwordx2 v[%d:%d], v2, %s offset:1792 %s' % (X + 14, X + 15, P['ws'], hpol))
    poll('L_pollA', loads, range(X, X + 16), T)
    stamp(7)
    M0, L0, M1, L1 = X + 12, X + 13, X + 14, X + 15
    e('v_mov_b32 v%d, v%d' % (X + 16, M0))
    e('v_mov_b32 v%d, v%d' % (X + 17, M1))
    allred8('v_max_f32', [X + 16, X + 17], [X + 18, X + 19])
    e('v_sub_f32 v%d, v%d, v%d' % (M0, M0, X + 16))
    e('v_sub_f32 v%d, v%d, v%d' % (M1, M1, X + 17))
    e('v_exp_f32 v%d, v%d' % (M0, M0))
    e('v_exp_f32 v%d, v%d' % (M1, M1))
    e('v_mul_f32 v%d, v%d, v%d' % (L0, L0, M0))
    e('v_mul_f32 v%d, v%d, v%d' % (L1, L1, M1))
    e('v_cndmask_b32 v%d, v%d, v%d, s[44:45]' % (X + 16, M1, M0))
    for r in range(4): e('v_mul_f32 v%d, v%d, v%d' % (X + r, X + r, M0))
    for r in range(4): e('v_mul_f32 v%d, v%d, v%d' % (X + 8 + r, X + 8 + r, M1))
    for r in range(4): e('v_mul_f32 v%d, v%d, v%d' % (X + 4 + r, X + 4 + r, X + 16))
    allred8('v_add_f32', [L0, L1], [X + 18, X + 19])
    e('v_rcp_f32 v%d, v%d' % (L0, L0))
    e('v_rcp_f32 v%d, v%d' % (L1, L1))
    redscat4([X, X + 4, X + 8])
    e('v_cndmask_b32 v%d, v%d, v%d, s[44:45]' % (X + 16, L1, L0))
    e('v_mul_f32 v%d, v%d, v%d' % (X, X, L0))
    e('v_mul_f32 v%d, v%d, v%d' % (X + 8, X + 8, L1))
    e('v_mul_f32 v%d, v%d, v%d' % (X + 4, X + 4, X + 16))
    for i in range(3): e('v_cvt_pk_bf16_f32 v%d, v%d, v%d' % (X + 4 * i, X + 4 * i, X + 4 * i))
    for i in range(3): e('ds_write_b32 v8, v%d offset:%d' % (X + 4 * i, 32 * i))
    O = 136
    for i in range(3):
        e('ds_read_b128 v[%d:%d], v9 offset:%d' % (O + 4 * i, O + 4 * i + 3, 16 * i))
    def proj(nt, O, W, BR):
        for t in range(nt + 1):
            if t < nt:
                if t % 4 == 0: e('s_waitcnt lgkmcnt(%d)' % (nt // 4 - 1 - t // 4))
                for d in range(4): e('v_and_b32 v%d, v%d, v%d' % (BR + 4 * t + d, O + t, VMh + d))
            if t > 0:
                bb = BR + 4 * (t - 1)
                e('v_mfma_f32_16x16x32_bf16 v[%d:%d], v[%d:%d], v[%d:%d], v[%d:%d]' % (A1, A1 + 3, W + 4 * (t - 1), W + 4 * (t - 1) + 3, bb, bb + 3, A1, A1 + 3))
    proj(12, O, WREG, 64)
    e('ds_write_b128 v10, v[%d:%d] offset:%d' % (A1, A1 + 3, L_YP))
    e('s_waitcnt lgkmcnt(0)')
    e('s_barrier')
    e('s_cmp_lg_u32 s29, 0')
    e('s_cbranch_scc1 L_exit')
    for w in range(1, 4):
        e('ds_read_b128 v[%d:%d], v10 offset:%d' % (X + 4 * w, X + 4 * w + 3, L_YP + 1024 * w))
    e('s_waitcnt lgkmcnt(0)')
    for r in range(4): e('v_add_f32 v%d, v%d, v%d' % (A1 + r, A1 + r, X + 4 + r))
    for r in range(4): e('v_add_f32 v%d, v%d, v%d' % (X + 8 + r, X + 8 + r, X + 12 + r))
    for r in range(4): e('v_add_f32 v%d, v%d, v%d' % (A1 + r, A1 + r, X + 8 + r))
    for r in range(4): e('v_min_u32 v%d, -2, v%d' % (A1 + r, A1 + r))
    e('global_store_dwordx4 v11, v[%d:%d], %s %s' % (A1, A1 + 3, P['ws'], hpol))
    stamp(9)
    e('s_branch L_exit')

    e.label('L_ffn2')
    e('s_cmp_eq_u32 s29, 3')
    e('s_cbranch_scc1 L_exit')
    e.vq = []
    e('s_mov_b32 s16, s80'); e('s_mov_b32 s17, s81')
    e('s_mov_b32 s18, %d' % (1536 * 1280))
    e('s_mul_i32 s36, s25, 192')
    e('s_lshl_b32 s37, s29, 6')
    e('s_add_u32 s36, s36, s37')
    e('s_lshl_b32 s38, s36, 1')
    e('v_lshl_add_u32 v9, v3, 1, s38')
    e('global_load_ushort v12, v9, %s' % P['b1'])
    e('global_load_ushort v13, v9, %s offset:16' % P['b1'])
    e('s_mul_i32 s36, s36, 1280')
    e('s_lshl_b32 s37, s24, 8')
    e('s_add_u32 s36, s36, s37')
    e('v_lshrrev_b32 v2, 4, v1')
    e('v_mul_u32_u24 v2, %d, v2' % (16 * 1280))
    e('v_and_b32 v11, 15, v1')
    e('v_lshl_add_u32 v2, v11, 4, v2')
    for t in range(16):
        if t >= 2: e.wait_vm_n(1)
        e('buffer_load_dwordx4 v[%d:%d], v2, s[16:19], s36 offen nt' % (WREG + 4 * t, WREG + 4 * t + 3))
        e('s_add_u32 s36, s36, 1280')
    e('s_mul_i32 s38, s25, 24')
    e('s_add_u32 s38, s38, s29')
    e('s_add_u32 s38, s38, 768')
    e('s_lshl_b32 s38, s38, 10')
    gather('L_pollH', 's38')
    H = [G, G + 2]
    for r in H: rnd(r)
    for k in range(2): e('v_lshlrev_b32 v%d, 16, v%d' % (12 + k, 12 + k))
    for k in range(2): e('v_add_f32 v%d, v%d, v%d' % (H[k], H[k], 12 + k))
    for r in H: rnd(r)
    for r in H:
        e('v_cmp_lt_f32 vcc, 0, v%d' % r)
        e('v_cndmask_b32 v%d, 0, v%d, vcc' % (r, r))
    for r in H: e('v_mul_f32 v%d, v%d, v%d' % (r, r, r))
    for r in H: e('v_cvt_pk_bf16_f32 v%d, v%d, v%d' % (r, r, r))
    e('s_lshl_b32 s39, s29, 9')
    e('s_add_u32 s39, s39, %d' % L_OD)
    e('v_lshl_add_u32 v8, v4, 8, s39')
    e('v_lshl_add_u32 v7, v3, 2, v8')
    e('v_lshrrev_b32 v9, 4, v1')
    e('v_lshl_add_u32 v9, v9, 6, v8')
    e('ds_write_b32 v7, v%d' % H[0])
    e('ds_write_b32 v7, v%d offset:32' % H[1])
    O = 136
    for i in range(4):
        e('ds_read_b128 v[%d:%d], v9 offset:%d' % (O + 4 * i, O + 4 * i + 3, 16 * i))
    for r in range(4): e('v_mov_b32 v%d, 0' % (A1 + r))
    e('s_lshl_b32 s38, s29, 10')
    e('s_add_u32 s38, s38, s7')
    e('v_lshl_add_u32 v11, v1, 4, s38')
    proj(16, O, WREG, 68)
    for r in range(4): e('v_min_u32 v%d, -2, v%d' % (A1 + r, A1 + r))
    e('global_store_dwordx4 v11, v[%d:%d], %s %s' % (A1, A1 + 3, P['ws'], hpol))
    stamp(9)
    e('s_branch L_exit')

    e.label('L_reducer')
    e.vq = []
    X = 112
    VT = T + 4
    e('v_mul_u32_u24 v2, 3072, v1')
    e('v_add_u32 v2, 2048, v2')
    for i in range(1, 4): e('v_add_u32 v%d, %d, v2' % (2 + i, 64 * 3072 * i))
    poll('L_pollC', ['global_load_dwordx2 v[%d:%d], v%d, %s %s' % (X + 2 * i, X + 2 * i + 1, 2 + i, P['ws'], hpol) for i in range(4)],
         [X + 1, X + 3, X + 5, X + 7], T, tagged=True, sleep=4)
    e('s_lshl_b32 s38, s4, 2')
    e('s_add_u32 s38, s38, s29')
    e('s_lshr_b32 s41, s38, 3')
    e('s_and_b32 s44, s38, 7')
    e('s_mul_i32 s39, s41, %d' % (NMSG * 1024))
    e('s_lshl_b32 s45, s44, 7')
    e('s_add_u32 s39, s39, s45')
    e('s_add_u32 s39, s39, %d' % OB)
    e('v_lshrrev_b32 v%d, 3, v1' % VT)
    e('v_lshl_add_u32 v%d, v%d, 10, s39' % (VT, VT))
    e('v_and_b32 v%d, 7, v1' % (VT + 7))
    e('v_lshl_add_u32 v%d, v%d, 4, v%d' % (VT, VT + 7, VT))
    for i in range(1, 7): e('v_add_u32 v%d, %d, v%d' % (VT + i, 8192 * i, VT))
    e('s_lshl_b32 s39, s41, 7')
    e('s_lshr_b32 s45, s44, 1')
    e('s_lshl_b32 s45, s45, 5')
    e('s_add_u32 s39, s39, s45')
    e('v_lshrrev_b32 v%d, 4, v1' % (X + 32))
    e('v_lshl_add_u32 v%d, v%d, 3, v%d' % (X + 32, X + 32, VT + 7))
    e('v_add_u32 v%d, s39, v%d' % (X + 32, X + 32))
    e('v_lshlrev_b32 v%d, 1, v%d' % (X + 32, X + 32))
    e('s_and_b32 s45, s44, 1')
    e('s_mul_i32 s45, s45, 1280')
    e('v_add_u32 v%d, s45, v%d' % (X + 33, X + 32))
    e('global_load_ushort v%d, v%d, %s' % (X + 34, X + 32, P['b2']))
    e('global_load_ushort v%d, v%d, %s' % (X + 35, X + 33, P['x']))
    poll('L_pollF', ['global_load_dwordx4 v[%d:%d], v%d, %s %s' % (X + 16 + 4 * i, X + 19 + 4 * i, VT + 4 + i, P['ws'], hpol) for i in range(3)],
         range(X + 16, X + 28), T, sleep=8)
    for r in range(4): e('v_add_f32 v%d, v%d, v%d' % (X + 16 + r, X + 16 + r, X + 20 + r))
    for r in range(4): e('v_add_f32 v%d, v%d, v%d' % (X + 16 + r, X + 16 + r, X + 24 + r))
    redscat4([X + 16])
    F = X + 16
    rnd(F)
    e('v_lshlrev_b32 v%d, 16, v%d' % (X + 34, X + 34))
    e('v_lshlrev_b32 v%d, 16, v%d' % (X + 35, X + 35))
    e('v_add_f32 v%d, v%d, v%d' % (F, F, X + 34))
    rnd(F)
    e('v_mul_f32 v%d, 0x%x, v%d' % (F + 1, LOG2E, F))
    e('v_exp_f32 v%d, -v%d' % (F + 1, F + 1))
    e('v_add_f32 v%d, 1.0, v%d' % (F + 1, F + 1))
    e('v_rcp_f32 v%d, v%d' % (F + 1, F + 1))
    e('v_mul_f32 v%d, v%d, v%d' % (F, F, F + 1))
    rnd(F)
    e('v_mov_b32 v%d, %d' % (X + 36, EP))
    e('v_mov_b32 v%d, s47' % (X + 37))
    stamp(6)
    e('s_barrier')
    poll('L_pollB', ['global_load_dwordx4 v[%d:%d], v%d, %s %s' % (X + 4 * i, X + 4 * i + 3, VT + i, P['ws'], hpol) for i in range(4)], range(X, X + 16), T)
    stamp(7)
    for r in range(4): e('v_add_f32 v%d, v%d, v%d' % (X + r, X + r, X + 4 + r))
    for r in range(4): e('v_add_f32 v%d, v%d, v%d' % (X + 8 + r, X + 8 + r, X + 12 + r))
    for r in range(4): e('v_add_f32 v%d, v%d, v%d' % (X + r, X + r, X + 8 + r))
    redscat4([X])
    rnd(X)
    e('v_mul_f32 v%d, v%d, v%d' % (X, X, F))
    rnd(X)
    e('v_add_f32 v%d, v%d, v%d' % (X, X, X + 35))
    e('v_cvt_pk_bf16_f32 v%d, v%d, v%d' % (X, X, X))
    e('s_mov_b32 exec_lo, 0x00ff00ff')
    e('s_mov_b32 exec_hi, 0x00ff00ff')
    e('global_store_short v%d, v%d, %s' % (X + 33, X, P['out']))
    e('s_cmp_lg_u32 s38, 0')
    e('s_cbranch_scc1 L_noep')
    e('s_mov_b64 exec, 1')
    e('global_store_dword v%d, v%d, %s' % (X + 36, X + 37, P['ws']))
    e.label('L_noep')
    if stamps:
        e('s_waitcnt vmcnt(0)')
        stamp(9)
    e.label('L_exit')
    dump_stamps()
    e.label('L_end')
    body = e.text()
    txt = HEAD + '; @launch grid=(256,1,1) block=(512,1,1) lds=%d\n' % (lds or LDS_BYTES)
    txt += '.amdgcn_target "amdgcn-amd-amdhsa--gfx950"\n.text\n.globl %s_kernel\n.p2align 8\n.type %s_kernel,@function\n%s_kernel:\n' % (NAME, NAME, NAME)
    txt += body + '    s_endpgm\n'
    txt += '''.section .rodata,"a"
.p2align 6
.amdhsa_kernel %s_kernel
  .amdhsa_next_free_vgpr 256
  .amdhsa_next_free_sgpr 96
  .amdhsa_accum_offset 256
  .amdhsa_group_segment_fixed_size 0
  .amdhsa_kernarg_size 104
  .amdhsa_user_sgpr_count 2
  .amdhsa_user_sgpr_kernarg_segment_ptr 1
  .amdhsa_system_sgpr_workgroup_id_x 1
  .amdhsa_float_denorm_mode_32 3
.end_amdhsa_kernel
''' % NAME
    return txt

if __name__ == '__main__':
    kw = eval('dict(%s)' % (sys.argv[2] if len(sys.argv) > 2 else ''))
    open(sys.argv[1], 'w').write(gen(**kw))
```

```python
import sys, os
sys.path.insert(0, os.path.dirname(os.path.abspath(__file__)))
from emit import Emitter
NAME = 'recurrent_scan__gqa_block_cached__dense_activation_squared_relu__decode'

HEAD = open('cdna_kernels/%s.s.ref' % NAME).read().split('; Override launch')[0] if os.path.exists('cdna_kernels/%s.s.ref' % NAME) else ''

QP = 0
OA = 1 << 20
OB = 2 << 20
EP = 3 << 20
TS = 16 << 20
NMSG = 56
L_Q = 64
L_STS = 896
L_OD = 1024
L_XN = 3072
L_ST = 8192
L_YP = 21504
LDS_BYTES = 26624

KVB = 2 * 32 * 8192 * 384
LOG2E = 0x3fb8aa3b
SCALE = 0x3d93cd3a

def gen(D=6, stamps=False, spin=2000000, hpol='sc1', lds=None, catch=6, PRE=48, burst=None, wdelay=0, prio=0, dbgwg=None):
    if burst is None: burst = D
    e = Emitter()
    P = dict(x='s[64:65]', K='s[66:67]', V='s[68:69]', wq='s[70:71]', wo='s[72:73]', w1='s[76:77]', b1='s[78:79]',
             w2='s[80:81]', b2='s[82:83]', out='s[84:85]', dbg='s[86:87]', ws='s[88:89]')
    def stamp(k):
        if not stamps: return
        e('s_memrealtime s[92:93]')
        e('s_waitcnt lgkmcnt(0)')
        e('v_writelane_b32 v63, s92, %d' % k)
    def dump_stamps():
        if not stamps: return
        e('s_mov_b64 exec, -1')
        e('s_lshl_b32 s92, s2, 3')
        e('s_add_u32 s92, s92, s3')
        e('s_lshl_b32 s92, s92, 8')
        e('s_add_u32 s92, s92, %d' % TS)
        e('v_lshlrev_b32 v62, 2, v1')
        e('v_add_u32 v62, s92, v62')
        e('global_store_dword v62, v63, %s' % P['ws'])
        e('s_waitcnt vmcnt(0)')
        if dbgwg is not None:
            e('s_cmp_lg_u32 s2, %d' % dbgwg)
            e('s_cbranch_scc1 L_end')
            e('s_and_b32 s92, s3, 3')
            e('s_cmp_lg_u32 s92, 0')
            e('s_cbranch_scc1 L_end')
            e('v_subrev_u32 v63, s90, v63')
            e('s_mul_i32 s92, s3, 6')
            e('v_lshl_add_u32 v62, v1, 2, s92')
            e('s_lshr_b32 s92, s3, 1')
            e('s_lshl_b32 exec_lo, 0xff, s92')
            e('s_mov_b32 exec_hi, 0')
            e('global_store_dword v62, v63, %s' % P['dbg'])
    def masks(m0, t0):
        e('v_and_b32 v%d, 1, v1' % t0)
        e('v_lshlrev_b32 v%d, 4, v%d' % (t0, t0))
        e('v_mov_b32 v%d, 0xffff' % (t0 + 1))
        e('v_lshlrev_b32 v%d, v%d, v%d' % (t0, t0, t0 + 1))
        e('v_bfe_u32 v%d, v1, 1, 2' % (t0 + 1))
        for d in range(4):
            e('v_cmp_eq_u32 vcc, %d, v%d' % (d, t0 + 1))
            e('v_cndmask_b32 v%d, 0, v%d, vcc' % (m0 + d, t0))
    def allred8(op, regs, tmps):
        for r in regs: e('%s_dpp v%d, v%d, v%d row_ror:8 row_mask:0xf bank_mask:0xf' % (op, r, r, r))
        for sw in ('v_permlane16_swap_b32', 'v_permlane32_swap_b32'):
            for r, t in zip(regs, tmps): e('v_mov_b32 v%d, v%d' % (t, r))
            for r, t in zip(regs, tmps): e('%s v%d, v%d' % (sw, r, t))
            for r, t in zip(regs, tmps): e('%s v%d, v%d, v%d' % (op, r, r, t))
    def allred_lo8(op, regs):
        for ctl in ('quad_perm:[1,0,3,2]', 'quad_perm:[2,3,0,1]', 'row_half_mirror'):
            for r in regs: e('%s_dpp v%d, v%d, v%d %s row_mask:0xf bank_mask:0xf' % (op, r, r, r, ctl))
    def redscat4(quads):
        for q in quads:
            e('v_permlane32_swap_b32 v%d, v%d' % (q, q + 2))
            e('v_permlane32_swap_b32 v%d, v%d' % (q + 1, q + 3))
        for q in quads:
            e('v_add_f32 v%d, v%d, v%d' % (q, q, q + 2))
            e('v_add_f32 v%d, v%d, v%d' % (q + 1, q + 1, q + 3))
        for q in quads: e('v_permlane16_swap_b32 v%d, v%d' % (q, q + 1))
        for q in quads: e('v_add_f32 v%d, v%d, v%d' % (q, q, q + 1))
        for q in quads: e('v_add_f32_dpp v%d, v%d, v%d row_ror:8 row_mask:0xf bank_mask:0xf' % (q, q, q))
    def rnd(r):
        e('v_cvt_pk_bf16_f32 v%d, v%d, v%d' % (r, r, r))
        e('v_and_b32 v%d, 0xffff0000, v%d' % (r, r))
    def fold(op, t, regs):
        rs = list(regs)
        if len(rs) == 1: e('v_mov_b32 v%d, v%d' % (t, rs[0])); return
        if len(rs) == 2: e('%s_u32 v%d, v%d, v%d' % (op, t, rs[0], rs[1])); return
        e('%s3_u32 v%d, v%d, v%d, v%d' % (op, t, rs[0], rs[1], rs[2])); rs = rs[3:]
        while len(rs) >= 2:
            e('%s3_u32 v%d, v%d, v%d, v%d' % (op, t, t, rs[0], rs[1])); rs = rs[2:]
        if rs: e('%s_u32 v%d, v%d, v%d' % (op, t, t, rs[0]))
    def poll(name, loads, regs, t, tagged=False, sleep=1):
        e('s_mov_b32 s40, %d' % spin)
        e.label(name)
        for l in loads: e(l)
        e.wait_vm_n(0)
        fold('v_max', t, regs)
        if tagged:
            fold('v_min', t + 1, regs)
            e('v_cmp_ne_u32 vcc, s47, v%d' % t)
            e('v_cmp_ne_u32 s[42:43], s47, v%d' % (t + 1))
            e('s_or_b64 vcc, vcc, s[42:43]')
        else:
            e('v_cmp_eq_u32 vcc, -1, v%d' % t)
        e('s_cbranch_vccz %s_done' % name)
        e('s_mov_b64 exec, vcc')
        e('s_sleep %d' % sleep)
        e('s_sub_u32 s40, s40, 1')
        e('s_cmp_lg_u32 s40, 0')
        e('s_cbranch_scc1 %s' % name)
        e.label(name + '_done')
        e('s_mov_b64 exec, -1')

    if stamps: e('s_memrealtime s[90:91]')
    e('s_cmp_ge_u32 s2, 256')
    e('s_cbranch_scc1 L_end')
    e('s_load_dwordx16 s[64:79], s[0:1], 0')
    e('s_load_dwordx8 s[80:87], s[0:1], 64')
    e('s_load_dwordx2 s[88:89], s[0:1], 96')
    e('v_lshrrev_b32 v1, 6, v0')
    e('v_readfirstlane_b32 s3, v1')
    e('v_and_b32 v1, 63, v0')
    e('s_lshr_b32 s4, s2, 3')
    e('s_and_b32 s5, s2, 7')
    if stamps:
        e('v_mov_b32 v63, 0')
    e('s_cmp_ge_u32 s3, 4')
    e('s_cbranch_scc1 L_helper')

    VQ, VM, VACC, VMX, VMT, VL, VS, VSA, VB, VT = 4, 16, 20, 32, 33, 34, 36, 40, 40, 56
    RING = 64
    e('v_lshrrev_b32 v2, 3, v1')
    e('v_mul_u32_u24 v2, 384, v2')
    e('v_and_b32 v3, 7, v1')
    e('v_lshl_add_u32 v2, v3, 4, v2')
    e('v_add_u32 v3, 6144, v2')
    e('s_mul_i32 s30, s4, 3145728')
    e('s_mul_i32 s31, s5, 393216')
    e('s_add_u32 s30, s30, s31')
    e('s_mul_i32 s31, s3, 12288')
    e('s_add_u32 s30, s30, s31')
    e('s_add_u32 s31, s30, 49152')
    e('s_add_u32 s32, s30, %d' % (2 * 49152))
    e('s_add_u32 s33, s30, %d' % (3 * 49152))
    e('s_mov_b32 s10, %d' % KVB); e('s_mov_b32 s11, 0x20000')
    e('s_mov_b32 s14, %d' % KVB); e('s_mov_b32 s15, 0x20000')
    e('s_waitcnt lgkmcnt(0)')
    e('s_mov_b32 s8, s66'); e('s_mov_b32 s9, s67')
    e('s_mov_b32 s12, s68'); e('s_mov_b32 s13, s69')
    def kvload(i, buf, soff, tag):
        srd = 's[8:11]' if i < 12 else 's[12:15]'
        g, n = divmod(i % 12, 3)
        r = RING + 4 * buf
        e('buffer_load_dwordx4 v[%d:%d], v%d, %s, %s offen offset:%d nt' % (r, r + 3, 2 + g // 2, srd, soff, (g % 2) * 3072 + n * 128), tag=tag)
    def sreg_of_step(s): return 's%d' % (30 + s)
    def issue_abs(k):
        s, i = divmod(k, 24)
        buf = k if k < 48 else i
        kvload(i, buf, sreg_of_step(s), ('kv', k))
    for k in range(D): issue_abs(k)
    if stamps: e('v_writelane_b32 v63, s90, 0')
    masks(VM, VT)
    e('s_mov_b32 s34, 0x%x' % SCALE)
    e('s_mov_b32 s35, 0x%x' % LOG2E)
    def reset_acc():
        for r in range(12): e('v_mov_b32 v%d, 0' % (VACC + r))
        e('v_mov_b32 v%d, 0xff800000' % VMX)
        e('v_mov_b32 v%d, 0xff800000' % VMT)
        e('v_mov_b32 v%d, 0' % VL)
    reset_acc()
    for k in range(D, PRE):
        e.wait_vm_n(D - 1)
        if k == D: stamp(7)
        issue_abs(k)
    stamp(1)
    e('s_barrier')
    stamp(2)
    def load_q(b):
        e('v_and_b32 v%d, 7, v1' % VT)
        e('v_lshlrev_b32 v%d, 4, v%d' % (VT, VT))
        for n in range(3):
            e('ds_read_b128 v[%d:%d], v%d offset:%d' % (VQ + 4 * n, VQ + 4 * n + 3, VT, L_Q + b * 384 + n * 128))
        e('s_waitcnt lgkmcnt(0)')
    load_q(0)
    lab = [0]
    def step(bufbase, pre, post, last=False):
        for i in range(12):
            g, n = divmod(i, 3)
            pre(i)
            r = RING + 4 * (bufbase + i)
            for d in range(4):
                acc = VSA + 2 * g + (d & 1)
                c = '0' if (n == 0 and d < 2) else 'v%d' % acc
                e('v_dot2_f32_bf16 v%d, v%d, v%d, %s' % (acc, r + d, VQ + 4 * n + d, c))
            post(i)
        S = [VS + g for g in range(4)]
        for g in range(4): e('v_add_f32 v%d, v%d, v%d' % (S[g], VSA + 2 * g, VSA + 2 * g + 1))
        allred_lo8('v_add_f32', S)
        def rnd4():
            e('v_cvt_pk_bf16_f32 v%d, v%d, v%d' % (VT, S[0], S[1]))
            e('v_cvt_pk_bf16_f32 v%d, v%d, v%d' % (VT + 1, S[2], S[3]))
            e('v_lshlrev_b32 v%d, 16, v%d' % (S[0], VT))
            e('v_and_b32 v%d, 0xffff0000, v%d' % (S[1], VT))
            e('v_lshlrev_b32 v%d, 16, v%d' % (S[2], VT + 1))
            e('v_and_b32 v%d, 0xffff0000, v%d' % (S[3], VT + 1))
        rnd4()
        for g in range(4): e('v_mul_f32 v%d, s34, v%d' % (S[g], S[g]))
        rnd4()
        e('v_max3_f32 v%d, v%d, v%d, v%d' % (VT, S[0], S[1], S[2]))
        e('v_max_f32 v%d, v%d, v%d' % (VT, VT, S[3]))
        e('v_cmp_gt_f32 vcc, v%d, v%d' % (VT, VMX))
        lab[0] += 1
        sk = 'L_nomax%d' % lab[0]
        e('s_cbranch_vccz %s' % sk)
        e('v_max_f32 v%d, v%d, v%d' % (VMX, VT, VMX))
        allred8('v_max_f32', [VMX], [VT + 1])
        e('v_mul_f32 v%d, s35, v%d' % (VT, VMX))
        e('v_sub_f32 v%d, v%d, v%d' % (VT + 1, VMT, VT))
        e('v_exp_f32 v%d, v%d' % (VT + 1, VT + 1))
        e('v_mov_b32 v%d, v%d' % (VMT, VT))
        for r in range(12): e('v_mul_f32 v%d, v%d, v%d' % (VACC + r, VACC + r, VT + 1))
        e('v_mul_f32 v%d, v%d, v%d' % (VL, VL, VT + 1))
        e.label(sk)
        for g in range(4): e('v_fma_f32 v%d, v%d, s35, -v%d' % (S[g], S[g], VMT))
        for g in range(4): e('v_exp_f32 v%d, v%d' % (S[g], S[g]))
        for g in range(4): e('v_cvt_pk_bf16_f32 v%d, v%d, v%d' % (VT + g, S[g], S[g]))
        for g in range(4):
            for d in range(4): e('v_and_b32 v%d, v%d, v%d' % (VB + 4 * g + d, VT + g, VM + d))
        e('v_add_f32 v%d, v%d, v%d' % (S[0], S[0], S[1]))
        e('v_add_f32 v%d, v%d, v%d' % (S[2], S[2], S[3]))
        e('v_add_f32 v%d, v%d, v%d' % (VL, VL, S[0]))
        e('v_add_f32 v%d, v%d, v%d' % (VL, VL, S[2]))
        if last: stash_stats(1)
        for i in range(12, 24):
            g, n = divmod(i - 12, 3)
            pre(i)
            r = RING + 4 * (bufbase + i)
            e('v_mfma_f32_16x16x32_bf16 v[%d:%d], v[%d:%d], v[%d:%d], v[%d:%d]' % (
                VACC + 4 * n, VACC + 4 * n + 3, r, r + 3, VB + 4 * g, VB + 4 * g + 3, VACC + 4 * n, VACC + 4 * n + 3))
            post(i)
    def stash_stats(b):
        allred8('v_add_f32', [VL], [VT])
        e('v_mov_b32 v%d, v%d' % (VT, VMT))
        e('v_mov_b32 v%d, v%d' % (VT + 1, VL))
        e('s_lshl_b32 s38, s3, 3')
        e('v_mov_b32 v%d, s38' % (VT + 2))
        e('s_mov_b64 exec, 1')
        e('ds_write_b64 v%d, v[%d:%d] offset:%d' % (VT + 2, VT, VT + 1, L_STS + b * 32))
        e('s_mov_b64 exec, -1')
        e('v_lshrrev_b32 v%d, 5, v1' % (VT + 3))
        e('v_mul_u32_u24 v%d, 768, v%d' % (VT + 3, VT + 3))
        e('v_bfe_u32 v%d, v1, 4, 1' % (VT + 4))
        e('v_lshl_add_u32 v%d, v%d, 7, v%d' % (VT + 3, VT + 4, VT + 3))
        e('v_and_b32 v%d, 7, v1' % (VT + 4))
        e('v_lshl_add_u32 v%d, v%d, 4, v%d' % (VT + 3, VT + 4, VT + 3))
        e('s_mul_i32 s38, s3, 1536')
        e('v_add_u32 v%d, s38, v%d' % (VT + 3, VT + 3))
        if b == 1:
            e('s_mul_i32 s38, s3, 6144')
            e('v_lshl_add_u32 v35, v1, 4, s38')
            e('s_lshl_b32 s38, s3, 5')
            e('v_mov_b32 v%d, s38' % (VT + 4))
            e('s_lshl_b32 s38, s2, 1')
            e('s_add_u32 s38, s38, s3')
            e('s_lshl_b32 s38, s38, 10')
            e('s_add_u32 s38, s38, %d' % OA)
            e('v_lshl_add_u32 v%d, v1, 4, s38' % (VT + 5))
    def stash_acc(b):
        e('s_mov_b32 exec_lo, 0x00ff00ff')
        e('s_mov_b32 exec_hi, 0xff00ff00')
        for n in range(3):
            e('ds_write_b128 v%d, v[%d:%d] offset:%d' % (VT + 3, VACC + 4 * n, VACC + 4 * n + 3, L_ST + b * 6144 + n * 256))
        e('s_mov_b64 exec, -1')

    nxt = [PRE]
    def mk(base):
        def pre(i):
            k = base + i
            e.wait_vm(('kv', k))
            while nxt[0] <= k + D and (nxt[0] < 48 or nxt[0] - 48 < k):
                issue_abs(nxt[0]); nxt[0] += 1
        def post(i):
            k = base + i
            if k < PRE:
                want = PRE + min(k + 1, burst + max(0, (k + 1 - burst) // catch))
                while nxt[0] < want and (nxt[0] < 48 or nxt[0] - 48 <= k):
                    issue_abs(nxt[0]); nxt[0] += 1
        return pre, post
    for s in range(3):
        pre, post = mk(24 * s)
        step(24 * s if s < 2 else 0, pre, post)
    assert nxt[0] == 72 + D
    stamp(3)
    e('s_mov_b32 s30, s33')
    e('s_mov_b32 s39, 3')
    e.vq = [('lp', i) for i in range(D)]
    e.label('L_loop')
    e('s_cmp_lg_u32 s39, 8')
    e('s_cbranch_scc1 L_noswitch')
    stash_stats(0)
    stash_acc(0)
    load_q(1)
    reset_acc()
    stamp(4)
    e.label('L_noswitch')
    e('s_cmp_eq_u32 s39, 7')
    e('s_cselect_b32 s31, %d, %d' % (KVB // 2 - 7 * 49152, 0))
    e('s_cselect_b32 s38, 0, 49152')
    e('s_add_u32 s31, s31, s38')
    e('s_add_u32 s31, s31, s30')
    def pre(i):
        e.wait_vm(('lp', i))
        k = i + D
        if k < 24: kvload(k, k, 's30', ('lp', k))
        else: kvload(k - 24, k - 24, 's31', ('lp', k - 24))
    step(0, pre, lambda i: None)
    e('s_mov_b32 s30, s31')
    e('s_add_u32 s39, s39, 1')
    e('s_cmp_lt_u32 s39, 15')
    e('s_cbranch_scc1 L_loop')
    assert e.vq == [('lp', i) for i in range(D)]
    def pre(i):
        e.wait_vm(('lp', i))
        k = i + D
        if k < 24: kvload(k, k, 's30', ('lp', k))
    step(0, pre, lambda i: None, last=True)
    stamp(5)
    stash_acc(1)
    e('s_waitcnt lgkmcnt(0)')
    e('s_barrier')
    X = RING + 96
    e('s_cmp_ge_u32 s3, 2')
    e('s_cbranch_scc1 L_exit')
    e('ds_read_b128 v[%d:%d], v%d offset:%d' % (X + 32, X + 35, VT + 4, L_STS))
    e('ds_read_b128 v[%d:%d], v%d offset:%d' % (X + 36, X + 39, VT + 4, L_STS + 16))
    for k in range(8):
        e('ds_read_b128 v[%d:%d], v35 offset:%d' % (X + 4 * k, X + 4 * k + 3, L_ST + 768 * k))
    e('s_waitcnt lgkmcnt(8)')
    MT = [X + 32, X + 34, X + 36, X + 38]; LL = [X + 33, X + 35, X + 37, X + 39]
    e('v_max3_f32 v%d, v%d, v%d, v%d' % (X + 40, MT[0], MT[1], MT[2]))
    e('v_max_f32 v%d, v%d, v%d' % (X + 40, X + 40, MT[3]))
    for w in range(4): e('v_sub_f32 v%d, v%d, v%d' % (MT[w], MT[w], X + 40))
    for w in range(4): e('v_exp_f32 v%d, v%d' % (MT[w], MT[w]))
    e('v_mul_f32 v%d, v%d, v%d' % (X + 41, MT[0], LL[0]))
    for w in range(1, 4): e('v_fma_f32 v%d, v%d, v%d, v%d' % (X + 41, MT[w], LL[w], X + 41))
    e('s_waitcnt lgkmcnt(0)')
    for w in range(4):
        for r in range(4): e('v_add_f32 v%d, v%d, v%d' % (X + 8 * w + r, X + 8 * w + r, X + 8 * w + 4 + r))
    for r in range(4): e('v_mul_f32 v%d, v%d, v%d' % (X + r, X + r, MT[0]))
    for w in range(1, 4):
        for r in range(4): e('v_fma_f32 v%d, v%d, v%d, v%d' % (X + r, X + 8 * w + r, MT[w], X + r))
    e('s_mov_b32 exec_lo, 0')
    e('s_mov_b32 exec_hi, 0x10000')
    e('v_mov_b32 v%d, v%d' % (X, X + 40))
    e('v_mov_b32 v%d, v%d' % (X + 1, X + 41))
    e('v_mov_b32 v%d, 0' % (X + 2))
    e('v_mov_b32 v%d, 0' % (X + 3))
    e('s_mov_b32 exec_lo, -1')
    e('s_mov_b32 exec_hi, 0x1ffff')
    for r in range(4): e('v_min_u32 v%d, -2, v%d' % (X + r, X + r))
    e('global_store_dwordx4 v%d, v[%d:%d], %s %s' % (VT + 5, X, X + 3, P['ws'], hpol))
    stamp(6)
    e('s_branch L_exit')

    e.label('L_helper')
    e.vq = []
    XR, WR, VMh, T = 8, 64, 24, 40
    if prio: e('s_setprio %d' % prio)
    e('s_sub_u32 s29, s3, 4')
    e('v_lshlrev_b32 v2, 2, v1')
    e('s_mul_i32 s30, s2, 2731')
    e('s_lshr_b32 s30, s30, 16')
    e('s_mul_i32 s31, s30, 24')
    e('s_sub_u32 s31, s2, s31')
    e('s_mul_i32 s32, s31, 21846')
    e('s_lshr_b32 s32, s32, 16')
    e('s_mul_i32 s33, s32, 3')
    e('s_sub_u32 s33, s31, s33')
    e('s_mul_i32 s34, s2, 3')
    e('s_add_u32 s34, s34, s29')
    e('s_add_u32 s35, s2, 768')
    e('s_mov_b32 s46, 3072')
    e('s_cmp_lt_u32 s29, 3')
    e('s_cselect_b32 s30, s4, s30')
    e('s_cselect_b32 s32, s5, s32')
    e('s_cselect_b32 s33, s29, s33')
    e('s_cselect_b32 s34, s34, s35')
    e('s_cselect_b32 s35, 12288, s46')
    e('s_cselect_b32 s18, %d, %d' % (640 * 12288, 0))
    e('s_cselect_b32 s36, 0, %d' % (640 * 3072))
    e('s_add_u32 s18, s18, s36')
    e('s_mov_b32 s19, 0x20000')
    e('s_mul_i32 s36, s32, 80')
    e('s_mul_i32 s37, s36, s35')
    e('s_mul_i32 s38, s30, 384')
    e('s_add_u32 s37, s37, s38')
    e('s_lshl_b32 s38, s33, 7')
    e('s_add_u32 s37, s37, s38')
    e('s_mul_i32 s38, s35, 10')
    e('v_lshrrev_b32 v3, 3, v1')
    e('v_mul_lo_u32 v3, v3, s38')
    e('v_and_b32 v4, 7, v1')
    e('v_lshl_add_u32 v3, v4, 4, v3')
    e('s_mov_b32 s48, %d' % EP)
    e('s_waitcnt lgkmcnt(0)')
    e('s_load_dword s47, %s, s48' % P['ws'])
    e('s_cmp_lt_u32 s29, 3')
    e('s_cselect_b32 s16, s70, s76')
    e('s_cselect_b32 s17, s71, s77')
    e('s_cselect_b32 s45, 0, s2')
    e('s_cmp_lt_u32 s45, 192')
    e('s_cselect_b32 s45, 1, 0')
    e('s_cbranch_scc0 L_hskip1')
    for b in range(2):
        for i in range(5):
            e('global_load_dword v%d, v2, %s offset:%d' % (XR + 5 * b + i, P['x'], b * 1280 + i * 256), tag='x')
    for g in range(10):
        e('buffer_load_dwordx4 v[%d:%d], v3, s[16:19], s37 offen nt' % (WR + 4 * g, WR + 4 * g + 3), tag=('w', g))
        if g < 9: e('s_add_u32 s37, s37, s35')
    e.label('L_hskip1')
    if stamps: e('v_writelane_b32 v63, s90, 0')
    stamp(8)
    e('s_add_u32 s26, s4, 32')
    e('s_cmp_eq_u32 s5, 5')
    e('s_cselect_b32 s26, s4, s26')
    e('s_mul_i32 s25, s26, 13108')
    e('s_lshr_b32 s25, s25, 16')
    e('s_mul_i32 s24, s25, 5')
    e('s_sub_u32 s24, s26, s24')
    e('s_mul_i32 s27, s25, 3')
    e('s_add_u32 s27, s27, 32')
    e('s_cmp_lt_u32 s26, 40')
    e('s_cselect_b32 s6, 1, 3')
    e('s_cmp_lt_u32 s4, 10')
    e('s_cselect_b32 s28, 2, 3')
    e('s_cmp_eq_u32 s5, 7')
    e('s_cselect_b32 s6, s28, s6')
    e('s_cmp_lt_u32 s5, 5')
    e('s_cselect_b32 s6, 0, s6')
    e('s_cselect_b32 s24, s5, s24')
    e('s_cselect_b32 s27, s4, s27')
    e('s_mul_i32 s7, s24, %d' % NMSG)
    e('s_add_u32 s7, s7, s27')
    e('s_lshl_b32 s7, s7, 10')
    e('s_add_u32 s7, s7, %d' % OB)
    masks(VMh, T + 6)
    e('s_waitcnt lgkmcnt(0)')
    e('s_mul_i32 s47, s47, 1664525')
    e('s_add_u32 s47, s47, 1013904223')
    e('s_cmp_eq_u32 s45, 0')
    e('s_cbranch_scc1 L_hbar')
    for r in range(4): e('v_mov_b32 v%d, -1' % (T + r))
    e('s_lshl_b32 s38, s2, 1')
    e('s_add_u32 s38, s38, s29')
    e('s_lshl_b32 s38, s38, 10')
    e('s_add_u32 s38, s38, %d' % OA)
    e('s_cmp_eq_u32 s29, 2')
    e('s_cselect_b32 s38, s7, s38')
    e('s_cselect_b32 s39, s6, 0')
    e('s_cselect_b32 s41, -1, 0x1ffff')
    e('v_lshl_add_u32 v%d, v1, 4, s38' % (T + 4))
    e('s_cmp_eq_u32 s29, 3')
    e('s_cselect_b32 s39, 2, s39')
    e('s_cmp_ge_u32 s39, 2')
    e('s_cbranch_scc1 L_noclear')
    e('s_mov_b32 exec_hi, s41')
    vq_save = list(e.vq)
    e('global_store_dwordx4 v%d, v[%d:%d], %s %s' % (T + 4, T, T + 3, P['ws'], hpol))
    e('s_cmp_eq_u32 s39, 0')
    e('s_cbranch_scc1 L_noclear')
    e('global_store_dwordx4 v%d, v[%d:%d], %s offset:1024 %s' % (T + 4, T, T + 3, P['ws'], hpol))
    e('global_store_dwordx4 v%d, v[%d:%d], %s offset:2048 %s' % (T + 4, T, T + 3, P['ws'], hpol))
    e.vq = vq_save
    e.label('L_noclear')
    e('s_mov_b64 exec, -1')
    F0 = 108
    e.wait_vm('x')
    stamp(1)
    for k in range(10):
        e('v_lshlrev_b32 v%d, 16, v%d' % (F0 + 2 * k, XR + k))
        e('v_and_b32 v%d, 0xffff0000, v%d' % (F0 + 2 * k + 1, XR + k))
    SM = [T + 8, T + 9]; TM = [T + 10, T + 11]
    for b in range(2):
        e('v_add_f32 v%d, v%d, v%d' % (SM[b], F0 + 10 * b, F0 + 10 * b + 1))
    for k in range(2, 10):
        for b in range(2): e('v_add_f32 v%d, v%d, v%d' % (SM[b], SM[b], F0 + 10 * b + k))
    allred_lo8('v_add_f32', SM)
    allred8('v_add_f32', SM, TM)
    e('s_mov_b32 s38, 0x3acccccd')
    for b in range(2): e('v_mul_f32 v%d, s38, v%d' % (SM[b], SM[b]))
    VR = [T + 12, T + 13]
    for k in range(10):
        for b in range(2): e('v_sub_f32 v%d, v%d, v%d' % (TM[b], F0 + 10 * b + k, SM[b]))
        for b in range(2):
            if k == 0: e('v_mul_f32 v%d, v%d, v%d' % (VR[b], TM[b], TM[b]))
            else: e('v_fma_f32 v%d, v%d, v%d, v%d' % (VR[b], TM[b], TM[b], VR[b]))
    allred_lo8('v_add_f32', VR)
    allred8('v_add_f32', VR, TM)
    for b in range(2): e('v_mul_f32 v%d, s38, v%d' % (VR[b], VR[b]))
    for b in range(2): rnd(SM[b])
    for b in range(2): rnd(VR[b])
    for b in range(2): e('v_add_f32 v%d, 0x3727c5ac, v%d' % (VR[b], VR[b]))
    for b in range(2): rnd(VR[b])
    for b in range(2): e('v_sqrt_f32 v%d, v%d' % (VR[b], VR[b]))
    for b in range(2): rnd(VR[b])
    for b in range(2): e('v_rcp_f32 v%d, v%d' % (TM[b], VR[b]))
    for b in range(2):
        for k in range(10): e('v_sub_f32 v%d, v%d, v%d' % (F0 + 10 * b + k, F0 + 10 * b + k, SM[b]))
    for k in range(20): rnd(F0 + k)
    G0 = 128
    for b in range(2):
        for k in range(10): e('v_mul_f32 v%d, v%d, v%d' % (G0 + 10 * b + k, F0 + 10 * b + k, TM[b]))
    for b in range(2):
        for k in range(10): e('v_fma_f32 v%d, -v%d, v%d, v%d' % (F0 + 10 * b + k, G0 + 10 * b + k, VR[b], F0 + 10 * b + k))
    for b in range(2):
        for k in range(10): e('v_fma_f32 v%d, v%d, v%d, v%d' % (G0 + 10 * b + k, F0 + 10 * b + k, TM[b], G0 + 10 * b + k))
    for k in range(20): e('v_cvt_pk_bf16_f32 v%d, v%d, v%d' % (G0 + k, G0 + k, G0 + k))
    e('v_lshlrev_b32 v%d, 3, v1' % (T + 8))
    for b in range(2):
        for i in range(5):
            e('ds_write_b64 v%d, v[%d:%d] offset:%d' % (T + 8, G0 + 10 * b + 2 * i, G0 + 10 * b + 2 * i + 1, L_XN + b * 2560 + i * 512))
    e('v_bfe_u32 v%d, v1, 3, 1' % (T + 8))
    e('v_mul_u32_u24 v%d, 2560, v%d' % (T + 8, T + 8))
    e('v_lshrrev_b32 v%d, 4, v1' % (T + 9))
    e('v_mul_u32_u24 v%d, 80, v%d' % (T + 9, T + 9))
    e('s_lshl_b32 s38, s36, 2')
    e('v_add3_u32 v%d, v%d, v%d, s38' % (T + 8, T + 8, T + 9))
    e('s_waitcnt lgkmcnt(0)')
    for i in range(5):
        e('ds_read_b128 v[%d:%d], v%d offset:%d' % (F0 + 4 * i, F0 + 4 * i + 3, T + 8, L_XN + 16 * i))
    A1, A2 = 28, 32
    for r in range(8): e('v_mov_b32 v%d, 0' % (A1 + r))
    e('s_lshl_b32 s38, s34, 10')
    e('v_lshl_add_u32 v%d, v1, 4, s38' % (T + 10))
    e('v_mov_b32 v%d, s47' % (T + 13))
    e('v_mov_b32 v%d, s47' % (T + 15))
    e('s_waitcnt lgkmcnt(0)')
    stamp(2)
    BB = 148
    for g in range(10):
        for k in range(2):
            for d in range(4): e('v_and_b32 v%d, v%d, v%d' % (BB + 8 * g + 4 * k + d, F0 + 10 * k + g, VMh + d))
    for g in range(10):
        e.wait_vm(('w', g))
        for k, A in enumerate((A1, A2)):
            bb = BB + 8 * g + 4 * k
            e('v_mfma_f32_16x16x32_bf16 v[%d:%d], v[%d:%d], v[%d:%d], v[%d:%d]' % (A, A + 3, WR + 4 * g, WR + 4 * g + 3, bb, bb + 3, A, A + 3))
    e('s_mov_b32 exec_lo, 0')
    for r in range(4): e('v_mov_b32 v%d, v%d' % (A1 + r, A2 + r))
    e('s_mov_b32 exec_lo, -1')
    e('v_permlane32_swap_b32 v%d, v%d' % (A1, A1 + 2))
    e('v_permlane32_swap_b32 v%d, v%d' % (A1 + 1, A1 + 3))
    e('v_add_f32 v%d, v%d, v%d' % (T + 12, A1, A1 + 2))
    e('v_add_f32 v%d, v%d, v%d' % (T + 14, A1 + 1, A1 + 3))
    e('s_waitcnt vmcnt(0)')
    e('global_store_dwordx4 v%d, v[%d:%d], %s %s' % (T + 10, T + 12, T + 15, P['ws'], hpol))
    stamp(3)
    e('s_cmp_eq_u32 s29, 3')
    e('s_cbranch_scc1 L_hbar')
    G = 64
    def gather(name, sbase):
        e('v_lshl_add_u32 v5, v1, 4, %s' % sbase)
        for i in range(1, 4): e('v_add_u32 v%d, %d, v5' % (5 + i, 6144 * i))
        loads = ['global_load_dwordx4 v[%d:%d], v%d, %s offset:%d %s' % (G + 4 * i, G + 4 * i + 3, 5 + i // 2, P['ws'], 3072 * (i % 2), hpol) for i in range(8)]
        poll(name, loads, [G + 2 * i + 1 for i in range(16)], T, tagged=True, sleep=2)
        for st in (16, 8, 4):
            for r in range(0, st, 2): e('v_add_f32 v%d, v%d, v%d' % (G + r, G + r, G + st + r))
    e('v_bfe_u32 v3, v1, 4, 1')
    e('v_lshlrev_b32 v3, 5, v3')
    e('v_lshrrev_b32 v4, 5, v1')
    e('v_lshl_add_u32 v3, v4, 4, v3')
    e('v_and_b32 v4, 7, v1')
    e('v_add_u32 v3, v3, v4')
    e('v_bfe_u32 v4, v1, 3, 1')
    e('v_mul_u32_u24 v10, 192, v4')
    e('v_add_u32 v10, v10, v3')
    e('s_lshl_b32 s38, s29, 7')
    e('v_lshl_add_u32 v10, v10, 1, s38')
    e('s_mul_i32 s38, s4, 24')
    e('s_add_u32 s38, s38, s29')
    e('s_lshl_b32 s38, s38, 10')
    gather('L_pollQ', 's38')
    stamp(4)
    e('v_cvt_pk_bf16_f32 v%d, v%d, v%d' % (G, G, G + 2))
    e('ds_write_b16 v10, v%d offset:%d' % (G, L_Q))
    e('ds_write_b16_d16_hi v10, v%d offset:%d' % (G, L_Q + 16))
    e('s_waitcnt lgkmcnt(0)')
    e.label('L_hbar')
    e('s_barrier')
    stamp(5)
    e('s_cmp_eq_u32 s6, 3')
    e('s_cbranch_scc1 L_exit')
    e('s_cmp_eq_u32 s6, 2')
    e('s_cbranch_scc1 L_reducer')
    e('s_cmp_eq_u32 s6, 1')
    e('s_cbranch_scc1 L_ffn2')

    WREG = 160
    if wdelay:
        for i in range(wdelay): e('s_sleep 127')
    e('s_mov_b32 s16, s72'); e('s_mov_b32 s17, s73')
    e('s_mov_b32 s18, %d' % (6144 * 1280))
    e('s_mul_i32 s36, s4, %d' % (192 * 1280))
    e('s_lshl_b32 s37, s24, 8')
    e('s_add_u32 s36, s36, s37')
    e('v_lshrrev_b32 v2, 4, v1')
    e('v_mul_u32_u24 v2, %d, v2' % (8 * 1280))
    e('v_and_b32 v3, 15, v1')
    e('v_lshl_add_u32 v2, v3, 4, v2')
    e('s_mul_i32 s37, s29, 12')
    e.vq = []
    for t in range(12):
        e('s_add_u32 s38, s37, %d' % t)
        e('s_lshr_b32 s39, s38, 3')
        e('s_lshl_b32 s39, s39, 5')
        e('s_and_b32 s38, s38, 7')
        e('s_add_u32 s38, s38, s39')
        e('s_mul_i32 s38, s38, 1280')
        e('s_add_u32 s38, s38, s36')
        if t >= 2: e.wait_vm_n(1)
        e('buffer_load_dwordx4 v[%d:%d], v2, s[16:19], s38 offen nt' % (WREG + 4 * t, WREG + 4 * t + 3))
    X = 112
    e('s_lshl_b32 s38, s4, 14')
    e('s_add_u32 s38, s38, %d' % OA)
    e('v_lshrrev_b32 v2, 3, v1')
    e('v_lshl_add_u32 v2, v2, 11, s38')
    e('v_and_b32 v3, 7, v1')
    e('s_mul_i32 s39, s29, 192')
    e('v_lshl_add_u32 v4, v3, 4, v2')
    e('v_add_u32 v4, s39, v4')
    e('v_add_u32 v6, %d, v4' % (1024 + 64))
    e('v_add_u32 v5, 128, v4')
    e('v_add_u32 v7, %d, v4' % (1024 - 64))
    e('v_cmp_gt_u32 vcc, 4, v3')
    e('v_cndmask_b32 v5, v7, v5, vcc')
    e('s_mov_b64 s[44:45], vcc')
    e('s_lshl_b32 s39, s29, 9')
    e('s_add_u32 s39, s39, %d' % L_OD)
    e('v_lshrrev_b32 v7, 4, v1')
    e('v_mul_u32_u24 v7, 96, v7')
    e('v_add_u32 v7, s39, v7')
    e('v_lshl_add_u32 v8, v3, 2, v7')
    e('v_bfe_u32 v9, v1, 3, 1')
    e('v_mul_u32_u24 v9, 48, v9')
    e('v_add_u32 v9, v9, v7')
    e('s_lshl_b32 s38, s29, 10')
    e('v_lshl_add_u32 v10, v1, 4, s38')
    e('v_lshl_add_u32 v11, v1, 4, s7')
    for r in range(4): e('v_mov_b32 v%d, 0' % (A1 + r))
    e.wait_vm_n(0)
    stamp(6)
    e('s_barrier')
    loads = ['global_load_dwordx4 v[%d:%d], v%d, %s %s' % (X + 4 * i, X + 4 * i + 3, 4 + i, P['ws'], hpol) for i in range(3)]
    loads.append('global_load_dwordx2 v[%d:%d], v2, %s offset:768 %s' % (X + 12, X + 13, P['ws'], hpol))
    loads.append('global_load_dwordx2 v[%d:%d], v2, %s offset:1792 %s' % (X + 14, X + 15, P['ws'], hpol))
    poll('L_pollA', loads, range(X, X + 16), T)
    stamp(7)
    M0, L0, M1, L1 = X + 12, X + 13, X + 14, X + 15
    e('v_mov_b32 v%d, v%d' % (X + 16, M0))
    e('v_mov_b32 v%d, v%d' % (X + 17, M1))
    allred8('v_max_f32', [X + 16, X + 17], [X + 18, X + 19])
    e('v_sub_f32 v%d, v%d, v%d' % (M0, M0, X + 16))
    e('v_sub_f32 v%d, v%d, v%d' % (M1, M1, X + 17))
    e('v_exp_f32 v%d, v%d' % (M0, M0))
    e('v_exp_f32 v%d, v%d' % (M1, M1))
    e('v_mul_f32 v%d, v%d, v%d' % (L0, L0, M0))
    e('v_mul_f32 v%d, v%d, v%d' % (L1, L1, M1))
    e('v_cndmask_b32 v%d, v%d, v%d, s[44:45]' % (X + 16, M1, M0))
    for r in range(4): e('v_mul_f32 v%d, v%d, v%d' % (X + r, X + r, M0))
    for r in range(4): e('v_mul_f32 v%d, v%d, v%d' % (X + 8 + r, X + 8 + r, M1))
    for r in range(4): e('v_mul_f32 v%d, v%d, v%d' % (X + 4 + r, X + 4 + r, X + 16))
    allred8('v_add_f32', [L0, L1], [X + 18, X + 19])
    e('v_rcp_f32 v%d, v%d' % (L0, L0))
    e('v_rcp_f32 v%d, v%d' % (L1, L1))
    redscat4([X, X + 4, X + 8])
    e('v_cndmask_b32 v%d, v%d, v%d, s[44:45]' % (X + 16, L1, L0))
    e('v_mul_f32 v%d, v%d, v%d' % (X, X, L0))
    e('v_mul_f32 v%d, v%d, v%d' % (X + 8, X + 8, L1))
    e('v_mul_f32 v%d, v%d, v%d' % (X + 4, X + 4, X + 16))
    for i in range(3): e('v_cvt_pk_bf16_f32 v%d, v%d, v%d' % (X + 4 * i, X + 4 * i, X + 4 * i))
    for i in range(3): e('ds_write_b32 v8, v%d offset:%d' % (X + 4 * i, 32 * i))
    O = 136
    for i in range(3):
        e('ds_read_b128 v[%d:%d], v9 offset:%d' % (O + 4 * i, O + 4 * i + 3, 16 * i))
    def proj(nt, O, W, BR):
        for t in range(nt + 1):
            if t < nt:
                if t % 4 == 0: e('s_waitcnt lgkmcnt(%d)' % (nt // 4 - 1 - t // 4))
                for d in range(4): e('v_and_b32 v%d, v%d, v%d' % (BR + 4 * t + d, O + t, VMh + d))
            if t > 0:
                bb = BR + 4 * (t - 1)
                e('v_mfma_f32_16x16x32_bf16 v[%d:%d], v[%d:%d], v[%d:%d], v[%d:%d]' % (A1, A1 + 3, W + 4 * (t - 1), W + 4 * (t - 1) + 3, bb, bb + 3, A1, A1 + 3))
    proj(12, O, WREG, 64)
    e('ds_write_b128 v10, v[%d:%d] offset:%d' % (A1, A1 + 3, L_YP))
    e('s_waitcnt lgkmcnt(0)')
    e('s_barrier')
    e('s_cmp_lg_u32 s29, 0')
    e('s_cbranch_scc1 L_exit')
    for w in range(1, 4):
        e('ds_read_b128 v[%d:%d], v10 offset:%d' % (X + 4 * w, X + 4 * w + 3, L_YP + 1024 * w))
    e('s_waitcnt lgkmcnt(0)')
    for r in range(4): e('v_add_f32 v%d, v%d, v%d' % (A1 + r, A1 + r, X + 4 + r))
    for r in range(4): e('v_add_f32 v%d, v%d, v%d' % (X + 8 + r, X + 8 + r, X + 12 + r))
    for r in range(4): e('v_add_f32 v%d, v%d, v%d' % (A1 + r, A1 + r, X + 8 + r))
    for r in range(4): e('v_min_u32 v%d, -2, v%d' % (A1 + r, A1 + r))
    e('global_store_dwordx4 v11, v[%d:%d], %s %s' % (A1, A1 + 3, P['ws'], hpol))
    stamp(9)
    e('s_branch L_exit')

    e.label('L_ffn2')
    e('s_cmp_eq_u32 s29, 3')
    e('s_cbranch_scc1 L_exit')
    e.vq = []
    e('s_mov_b32 s16, s80'); e('s_mov_b32 s17, s81')
    e('s_mov_b32 s18, %d' % (1536 * 1280))
    e('s_mul_i32 s36, s25, 192')
    e('s_lshl_b32 s37, s29, 6')
    e('s_add_u32 s36, s36, s37')
    e('s_lshl_b32 s38, s36, 1')
    e('v_lshl_add_u32 v9, v3, 1, s38')
    e('global_load_ushort v12, v9, %s' % P['b1'])
    e('global_load_ushort v13, v9, %s offset:16' % P['b1'])
    e('s_mul_i32 s36, s36, 1280')
    e('s_lshl_b32 s37, s24, 8')
    e('s_add_u32 s36, s36, s37')
    e('v_lshrrev_b32 v2, 4, v1')
    e('v_mul_u32_u24 v2, %d, v2' % (16 * 1280))
    e('v_and_b32 v11, 15, v1')
    e('v_lshl_add_u32 v2, v11, 4, v2')
    for t in range(16):
        if t >= 2: e.wait_vm_n(1)
        e('buffer_load_dwordx4 v[%d:%d], v2, s[16:19], s36 offen nt' % (WREG + 4 * t, WREG + 4 * t + 3))
        e('s_add_u32 s36, s36, 1280')
    e('s_mul_i32 s38, s25, 24')
    e('s_add_u32 s38, s38, s29')
    e('s_add_u32 s38, s38, 768')
    e('s_lshl_b32 s38, s38, 10')
    gather('L_pollH', 's38')
    H = [G, G + 2]
    for r in H: rnd(r)
    for k in range(2): e('v_lshlrev_b32 v%d, 16, v%d' % (12 + k, 12 + k))
    for k in range(2): e('v_add_f32 v%d, v%d, v%d' % (H[k], H[k], 12 + k))
    for r in H: rnd(r)
    for r in H:
        e('v_cmp_lt_f32 vcc, 0, v%d' % r)
        e('v_cndmask_b32 v%d, 0, v%d, vcc' % (r, r))
    for r in H: e('v_mul_f32 v%d, v%d, v%d' % (r, r, r))
    for r in H: e('v_cvt_pk_bf16_f32 v%d, v%d, v%d' % (r, r, r))
    e('s_lshl_b32 s39, s29, 9')
    e('s_add_u32 s39, s39, %d' % L_OD)
    e('v_lshl_add_u32 v8, v4, 8, s39')
    e('v_lshl_add_u32 v7, v3, 2, v8')
    e('v_lshrrev_b32 v9, 4, v1')
    e('v_lshl_add_u32 v9, v9, 6, v8')
    e('ds_write_b32 v7, v%d' % H[0])
    e('ds_write_b32 v7, v%d offset:32' % H[1])
    O = 136
    for i in range(4):
        e('ds_read_b128 v[%d:%d], v9 offset:%d' % (O + 4 * i, O + 4 * i + 3, 16 * i))
    for r in range(4): e('v_mov_b32 v%d, 0' % (A1 + r))
    e('s_lshl_b32 s38, s29, 10')
    e('s_add_u32 s38, s38, s7')
    e('v_lshl_add_u32 v11, v1, 4, s38')
    proj(16, O, WREG, 68)
    for r in range(4): e('v_min_u32 v%d, -2, v%d' % (A1 + r, A1 + r))
    e('global_store_dwordx4 v11, v[%d:%d], %s %s' % (A1, A1 + 3, P['ws'], hpol))
    stamp(9)
    e('s_branch L_exit')

    e.label('L_reducer')
    e.vq = []
    X = 112
    VT = T + 4
    e('v_mul_u32_u24 v2, 3072, v1')
    e('v_add_u32 v2, 2048, v2')
    for i in range(1, 4): e('v_add_u32 v%d, %d, v2' % (2 + i, 64 * 3072 * i))
    poll('L_pollC', ['global_load_dwordx2 v[%d:%d], v%d, %s %s' % (X + 2 * i, X + 2 * i + 1, 2 + i, P['ws'], hpol) for i in range(4)],
         [X + 1, X + 3, X + 5, X + 7], T, tagged=True, sleep=4)
    e('s_lshl_b32 s38, s4, 2')
    e('s_add_u32 s38, s38, s29')
    e('s_lshr_b32 s41, s38, 3')
    e('s_and_b32 s44, s38, 7')
    e('s_mul_i32 s39, s41, %d' % (NMSG * 1024))
    e('s_lshl_b32 s45, s44, 7')
    e('s_add_u32 s39, s39, s45')
    e('s_add_u32 s39, s39, %d' % OB)
    e('v_lshrrev_b32 v%d, 3, v1' % VT)
    e('v_lshl_add_u32 v%d, v%d, 10, s39' % (VT, VT))
    e('v_and_b32 v%d, 7, v1' % (VT + 7))
    e('v_lshl_add_u32 v%d, v%d, 4, v%d' % (VT, VT + 7, VT))
    for i in range(1, 7): e('v_add_u32 v%d, %d, v%d' % (VT + i, 8192 * i, VT))
    e('s_lshl_b32 s39, s41, 7')
    e('s_lshr_b32 s45, s44, 1')
    e('s_lshl_b32 s45, s45, 5')
    e('s_add_u32 s39, s39, s45')
    e('v_lshrrev_b32 v%d, 4, v1' % (X + 32))
    e('v_lshl_add_u32 v%d, v%d, 3, v%d' % (X + 32, X + 32, VT + 7))
    e('v_add_u32 v%d, s39, v%d' % (X + 32, X + 32))
    e('v_lshlrev_b32 v%d, 1, v%d' % (X + 32, X + 32))
    e('s_and_b32 s45, s44, 1')
    e('s_mul_i32 s45, s45, 1280')
    e('v_add_u32 v%d, s45, v%d' % (X + 33, X + 32))
    e('global_load_ushort v%d, v%d, %s' % (X + 34, X + 32, P['b2']))
    e('global_load_ushort v%d, v%d, %s' % (X + 35, X + 33, P['x']))
    poll('L_pollF', ['global_load_dwordx4 v[%d:%d], v%d, %s %s' % (X + 16 + 4 * i, X + 19 + 4 * i, VT + 4 + i, P['ws'], hpol) for i in range(3)],
         range(X + 16, X + 28), T, sleep=8)
    for r in range(4): e('v_add_f32 v%d, v%d, v%d' % (X + 16 + r, X + 16 + r, X + 20 + r))
    for r in range(4): e('v_add_f32 v%d, v%d, v%d' % (X + 16 + r, X + 16 + r, X + 24 + r))
    redscat4([X + 16])
    F = X + 16
    rnd(F)
    e('v_lshlrev_b32 v%d, 16, v%d' % (X + 34, X + 34))
    e('v_lshlrev_b32 v%d, 16, v%d' % (X + 35, X + 35))
    e('v_add_f32 v%d, v%d, v%d' % (F, F, X + 34))
    rnd(F)
    e('v_mul_f32 v%d, 0x%x, v%d' % (F + 1, LOG2E, F))
    e('v_exp_f32 v%d, -v%d' % (F + 1, F + 1))
    e('v_add_f32 v%d, 1.0, v%d' % (F + 1, F + 1))
    e('v_rcp_f32 v%d, v%d' % (F + 1, F + 1))
    e('v_mul_f32 v%d, v%d, v%d' % (F, F, F + 1))
    rnd(F)
    e('v_mov_b32 v%d, %d' % (X + 36, EP))
    e('v_mov_b32 v%d, s47' % (X + 37))
    stamp(6)
    e('s_barrier')
    poll('L_pollB', ['global_load_dwordx4 v[%d:%d], v%d, %s %s' % (X + 4 * i, X + 4 * i + 3, VT + i, P['ws'], hpol) for i in range(4)], range(X, X + 16), T)
    stamp(7)
    for r in range(4): e('v_add_f32 v%d, v%d, v%d' % (X + r, X + r, X + 4 + r))
    for r in range(4): e('v_add_f32 v%d, v%d, v%d' % (X + 8 + r, X + 8 + r, X + 12 + r))
    for r in range(4): e('v_add_f32 v%d, v%d, v%d' % (X + r, X + r, X + 8 + r))
    redscat4([X])
    rnd(X)
    e('v_mul_f32 v%d, v%d, v%d' % (X, X, F))
    rnd(X)
    e('v_add_f32 v%d, v%d, v%d' % (X, X, X + 35))
    e('v_cvt_pk_bf16_f32 v%d, v%d, v%d' % (X, X, X))
    e('s_mov_b32 exec_lo, 0x00ff00ff')
    e('s_mov_b32 exec_hi, 0x00ff00ff')
    e('global_store_short v%d, v%d, %s' % (X + 33, X, P['out']))
    e('s_cmp_lg_u32 s38, 0')
    e('s_cbranch_scc1 L_noep')
    e('s_mov_b64 exec, 1')
    e('global_store_dword v%d, v%d, %s' % (X + 36, X + 37, P['ws']))
    e.label('L_noep')
    if stamps:
        e('s_waitcnt vmcnt(0)')
        stamp(9)
    e.label('L_exit')
    dump_stamps()
    e.label('L_end')
    body = e.text()
    txt = HEAD + '; @launch grid=(256,1,1) block=(512,1,1) lds=%d\n' % (lds or LDS_BYTES)
    txt += '.amdgcn_target "amdgcn-amd-amdhsa--gfx950"\n.text\n.globl %s_kernel\n.p2align 8\n.type %s_kernel,@function\n%s_kernel:\n' % (NAME, NAME, NAME)
    txt += body + '    s_endpgm\n'
    txt += '''.section .rodata,"a"
.p2align 6
.amdhsa_kernel %s_kernel
  .amdhsa_next_free_vgpr 256
  .amdhsa_next_free_sgpr 96
  .amdhsa_accum_offset 256
  .amdhsa_group_segment_fixed_size 0
  .amdhsa_kernarg_size 104
  .amdhsa_user_sgpr_count 2
  .amdhsa_user_sgpr_kernarg_segment_ptr 1
  .amdhsa_system_sgpr_workgroup_id_x 1
  .amdhsa_float_denorm_mode_32 3
.end_amdhsa_kernel
''' % NAME
    return txt

if __name__ == '__main__':
    kw = eval('dict(%s)' % (sys.argv[2] if len(sys.argv) > 2 else ''))
    open(sys.argv[1], 'w').write(gen(**kw))
```

```python
import sys, os
sys.path.insert(0, os.path.dirname(os.path.abspath(__file__)))
from emit import Emitter
NAME = 'recurrent_scan__gqa_block_cached__dense_activation_squared_relu__decode'

HEAD = open('cdna_kernels/%s.s.ref' % NAME).read().split('; Override launch')[0] if os.path.exists('cdna_kernels/%s.s.ref' % NAME) else ''

QP = 0
OA = 1 << 20
OB = 2 << 20
EP = 3 << 20
TS = 16 << 20
NMSG = 56
L_Q = 64
L_STS = 896
L_OD = 1024
L_XN = 3072
L_ST = 8192
L_YP = 21504
LDS_BYTES = 26624

KVB = 2 * 32 * 8192 * 384
LOG2E = 0x3fb8aa3b
SCALE = 0x3d93cd3a

def gen(D=6, stamps=False, spin=2000000, hpol='sc1', lds=None, catch=6, PRE=48, burst=None, wdelay=0, prio=0, dbgwg=None, padto=0):
    if burst is None: burst = D
    e = Emitter()
    P = dict(x='s[64:65]', K='s[66:67]', V='s[68:69]', wq='s[70:71]', wo='s[72:73]', w1='s[76:77]', b1='s[78:79]',
             w2='s[80:81]', b2='s[82:83]', out='s[84:85]', dbg='s[86:87]', ws='s[88:89]')
    def stamp(k):
        if not stamps: return
        e('s_memrealtime s[92:93]')
        e('s_waitcnt lgkmcnt(0)')
        e('v_writelane_b32 v63, s92, %d' % k)
    def dump_stamps():
        if not stamps: return
        e('s_mov_b64 exec, -1')
        e('s_lshl_b32 s92, s2, 3')
        e('s_add_u32 s92, s92, s3')
        e('s_lshl_b32 s92, s92, 8')
        e('s_add_u32 s92, s92, %d' % TS)
        e('v_lshlrev_b32 v62, 2, v1')
        e('v_add_u32 v62, s92, v62')
        e('global_store_dword v62, v63, %s' % P['ws'])
        e('s_waitcnt vmcnt(0)')
        if dbgwg is not None:
            e('s_cmp_lg_u32 s2, %d' % dbgwg)
            e('s_cbranch_scc1 L_end')
            e('s_and_b32 s92, s3, 3')
            e('s_cmp_lg_u32 s92, 0')
            e('s_cbranch_scc1 L_end')
            e('v_subrev_u32 v63, s90, v63')
            e('s_mul_i32 s92, s3, 6')
            e('v_lshl_add_u32 v62, v1, 2, s92')
            e('s_lshr_b32 s92, s3, 1')
            e('s_lshl_b32 exec_lo, 0xff, s92')
            e('s_mov_b32 exec_hi, 0')
            e('global_store_dword v62, v63, %s' % P['dbg'])
    def masks(m0, t0):
        e('v_and_b32 v%d, 1, v1' % t0)
        e('v_lshlrev_b32 v%d, 4, v%d' % (t0, t0))
        e('v_mov_b32 v%d, 0xffff' % (t0 + 1))
        e('v_lshlrev_b32 v%d, v%d, v%d' % (t0, t0, t0 + 1))
        e('v_bfe_u32 v%d, v1, 1, 2' % (t0 + 1))
        for d in range(4):
            e('v_cmp_eq_u32 vcc, %d, v%d' % (d, t0 + 1))
            e('v_cndmask_b32 v%d, 0, v%d, vcc' % (m0 + d, t0))
    def allred8(op, regs, tmps):
        for r in regs: e('%s_dpp v%d, v%d, v%d row_ror:8 row_mask:0xf bank_mask:0xf' % (op, r, r, r))
        for sw in ('v_permlane16_swap_b32', 'v_permlane32_swap_b32'):
            for r, t in zip(regs, tmps): e('v_mov_b32 v%d, v%d' % (t, r))
            for r, t in zip(regs, tmps): e('%s v%d, v%d' % (sw, r, t))
            for r, t in zip(regs, tmps): e('%s v%d, v%d, v%d' % (op, r, r, t))
    def allred_lo8(op, regs):
        for ctl in ('quad_perm:[1,0,3,2]', 'quad_perm:[2,3,0,1]', 'row_half_mirror'):
            for r in regs: e('%s_dpp v%d, v%d, v%d %s row_mask:0xf bank_mask:0xf' % (op, r, r, r, ctl))
    def redscat4(quads):
        for q in quads:
            e('v_permlane32_swap_b32 v%d, v%d' % (q, q + 2))
            e('v_permlane32_swap_b32 v%d, v%d' % (q + 1, q + 3))
        for q in quads:
            e('v_add_f32 v%d, v%d, v%d' % (q, q, q + 2))
            e('v_add_f32 v%d, v%d, v%d' % (q + 1, q + 1, q + 3))
        for q in quads: e('v_permlane16_swap_b32 v%d, v%d' % (q, q + 1))
        for q in quads: e('v_add_f32 v%d, v%d, v%d' % (q, q, q + 1))
        for q in quads: e('v_add_f32_dpp v%d, v%d, v%d row_ror:8 row_mask:0xf bank_mask:0xf' % (q, q, q))
    def rnd(r):
        e('v_cvt_pk_bf16_f32 v%d, v%d, v%d' % (r, r, r))
        e('v_and_b32 v%d, 0xffff0000, v%d' % (r, r))
    def fold(op, t, regs):
        rs = list(regs)
        if len(rs) == 1: e('v_mov_b32 v%d, v%d' % (t, rs[0])); return
        if len(rs) == 2: e('%s_u32 v%d, v%d, v%d' % (op, t, rs[0], rs[1])); return
        e('%s3_u32 v%d, v%d, v%d, v%d' % (op, t, rs[0], rs[1], rs[2])); rs = rs[3:]
        while len(rs) >= 2:
            e('%s3_u32 v%d, v%d, v%d, v%d' % (op, t, t, rs[0], rs[1])); rs = rs[2:]
        if rs: e('%s_u32 v%d, v%d, v%d' % (op, t, t, rs[0]))
    def poll(name, loads, regs, t, tagged=False, sleep=1):
        e('s_mov_b32 s40, %d' % spin)
        e.label(name)
        for l in loads: e(l)
        e.wait_vm_n(0)
        fold('v_max', t, regs)
        if tagged:
            fold('v_min', t + 1, regs)
            e('v_cmp_ne_u32 vcc, s47, v%d' % t)
            e('v_cmp_ne_u32 s[42:43], s47, v%d' % (t + 1))
            e('s_or_b64 vcc, vcc, s[42:43]')
        else:
            e('v_cmp_eq_u32 vcc, -1, v%d' % t)
        e('s_cbranch_vccz %s_done' % name)
        e('s_mov_b64 exec, vcc')
        e('s_sleep %d' % sleep)
        e('s_sub_u32 s40, s40, 1')
        e('s_cmp_lg_u32 s40, 0')
        e('s_cbranch_scc1 %s' % name)
        e.label(name + '_done')
        e('s_mov_b64 exec, -1')

    if stamps or padto: e('s_memrealtime s[90:91]')
    e('s_cmp_ge_u32 s2, 256')
    e('s_cbranch_scc1 L_end')
    e('s_load_dwordx16 s[64:79], s[0:1], 0')
    e('s_load_dwordx8 s[80:87], s[0:1], 64')
    e('s_load_dwordx2 s[88:89], s[0:1], 96')
    e('v_lshrrev_b32 v1, 6, v0')
    e('v_readfirstlane_b32 s3, v1')
    e('v_and_b32 v1, 63, v0')
    e('s_lshr_b32 s4, s2, 3')
    e('s_and_b32 s5, s2, 7')
    if stamps:
        e('v_mov_b32 v63, 0')
    e('s_cmp_ge_u32 s3, 4')
    e('s_cbranch_scc1 L_helper')

    VQ, VM, VACC, VMX, VMT, VL, VS, VSA, VB, VT = 4, 16, 20, 32, 33, 34, 36, 40, 40, 56
    RING = 64
    e('v_lshrrev_b32 v2, 3, v1')
    e('v_mul_u32_u24 v2, 384, v2')
    e('v_and_b32 v3, 7, v1')
    e('v_lshl_add_u32 v2, v3, 4, v2')
    e('v_add_u32 v3, 6144, v2')
    e('s_mul_i32 s30, s4, 3145728')
    e('s_mul_i32 s31, s5, 393216')
    e('s_add_u32 s30, s30, s31')
    e('s_mul_i32 s31, s3, 12288')
    e('s_add_u32 s30, s30, s31')
    e('s_add_u32 s31, s30, 49152')
    e('s_add_u32 s32, s30, %d' % (2 * 49152))
    e('s_add_u32 s33, s30, %d' % (3 * 49152))
    e('s_mov_b32 s10, %d' % KVB); e('s_mov_b32 s11, 0x20000')
    e('s_mov_b32 s14, %d' % KVB); e('s_mov_b32 s15, 0x20000')
    e('s_waitcnt lgkmcnt(0)')
    e('s_mov_b32 s8, s66'); e('s_mov_b32 s9, s67')
    e('s_mov_b32 s12, s68'); e('s_mov_b32 s13, s69')
    def kvload(i, buf, soff, tag):
        srd = 's[8:11]' if i < 12 else 's[12:15]'
        g, n = divmod(i % 12, 3)
        r = RING + 4 * buf
        e('buffer_load_dwordx4 v[%d:%d], v%d, %s, %s offen offset:%d nt' % (r, r + 3, 2 + g // 2, srd, soff, (g % 2) * 3072 + n * 128), tag=tag)
    def sreg_of_step(s): return 's%d' % (30 + s)
    def issue_abs(k):
        s, i = divmod(k, 24)
        buf = k if k < 48 else i
        kvload(i, buf, sreg_of_step(s), ('kv', k))
    for k in range(D): issue_abs(k)
    if stamps: e('v_writelane_b32 v63, s90, 0')
    masks(VM, VT)
    e('s_mov_b32 s34, 0x%x' % SCALE)
    e('s_mov_b32 s35, 0x%x' % LOG2E)
    def reset_acc():
        for r in range(12): e('v_mov_b32 v%d, 0' % (VACC + r))
        e('v_mov_b32 v%d, 0xff800000' % VMX)
        e('v_mov_b32 v%d, 0xff800000' % VMT)
        e('v_mov_b32 v%d, 0' % VL)
    reset_acc()
    for k in range(D, PRE):
        e.wait_vm_n(D - 1)
        if k == D: stamp(7)
        issue_abs(k)
    stamp(1)
    e('s_barrier')
    stamp(2)
    def load_q(b):
        e('v_and_b32 v%d, 7, v1' % VT)
        e('v_lshlrev_b32 v%d, 4, v%d' % (VT, VT))
        for n in range(3):
            e('ds_read_b128 v[%d:%d], v%d offset:%d' % (VQ + 4 * n, VQ + 4 * n + 3, VT, L_Q + b * 384 + n * 128))
        e('s_waitcnt lgkmcnt(0)')
    load_q(0)
    lab = [0]
    def step(bufbase, pre, post, last=False):
        for i in range(12):
            g, n = divmod(i, 3)
            pre(i)
            r = RING + 4 * (bufbase + i)
            for d in range(4):
                acc = VSA + 2 * g + (d & 1)
                c = '0' if (n == 0 and d < 2) else 'v%d' % acc
                e('v_dot2_f32_bf16 v%d, v%d, v%d, %s' % (acc, r + d, VQ + 4 * n + d, c))
            post(i)
        S = [VS + g for g in range(4)]
        for g in range(4): e('v_add_f32 v%d, v%d, v%d' % (S[g], VSA + 2 * g, VSA + 2 * g + 1))
        allred_lo8('v_add_f32', S)
        def rnd4():
            e('v_cvt_pk_bf16_f32 v%d, v%d, v%d' % (VT, S[0], S[1]))
            e('v_cvt_pk_bf16_f32 v%d, v%d, v%d' % (VT + 1, S[2], S[3]))
            e('v_lshlrev_b32 v%d, 16, v%d' % (S[0], VT))
            e('v_and_b32 v%d, 0xffff0000, v%d' % (S[1], VT))
            e('v_lshlrev_b32 v%d, 16, v%d' % (S[2], VT + 1))
            e('v_and_b32 v%d, 0xffff0000, v%d' % (S[3], VT + 1))
        rnd4()
        for g in range(4): e('v_mul_f32 v%d, s34, v%d' % (S[g], S[g]))
        rnd4()
        e('v_max3_f32 v%d, v%d, v%d, v%d' % (VT, S[0], S[1], S[2]))
        e('v_max_f32 v%d, v%d, v%d' % (VT, VT, S[3]))
        e('v_cmp_gt_f32 vcc, v%d, v%d' % (VT, VMX))
        lab[0] += 1
        sk = 'L_nomax%d' % lab[0]
        e('s_cbranch_vccz %s' % sk)
        e('v_max_f32 v%d, v%d, v%d' % (VMX, VT, VMX))
        allred8('v_max_f32', [VMX], [VT + 1])
        e('v_mul_f32 v%d, s35, v%d' % (VT, VMX))
        e('v_sub_f32 v%d, v%d, v%d' % (VT + 1, VMT, VT))
        e('v_exp_f32 v%d, v%d' % (VT + 1, VT + 1))
        e('v_mov_b32 v%d, v%d' % (VMT, VT))
        for r in range(12): e('v_mul_f32 v%d, v%d, v%d' % (VACC + r, VACC + r, VT + 1))
        e('v_mul_f32 v%d, v%d, v%d' % (VL, VL, VT + 1))
        e.label(sk)
        for g in range(4): e('v_fma_f32 v%d, v%d, s35, -v%d' % (S[g], S[g], VMT))
        for g in range(4): e('v_exp_f32 v%d, v%d' % (S[g], S[g]))
        for g in range(4): e('v_cvt_pk_bf16_f32 v%d, v%d, v%d' % (VT + g, S[g], S[g]))
        for g in range(4):
            for d in range(4): e('v_and_b32 v%d, v%d, v%d' % (VB + 4 * g + d, VT + g, VM + d))
        e('v_add_f32 v%d, v%d, v%d' % (S[0], S[0], S[1]))
        e('v_add_f32 v%d, v%d, v%d' % (S[2], S[2], S[3]))
        e('v_add_f32 v%d, v%d, v%d' % (VL, VL, S[0]))
        e('v_add_f32 v%d, v%d, v%d' % (VL, VL, S[2]))
        if last: stash_stats(1)
        for i in range(12, 24):
            g, n = divmod(i - 12, 3)
            pre(i)
            r = RING + 4 * (bufbase + i)
            e('v_mfma_f32_16x16x32_bf16 v[%d:%d], v[%d:%d], v[%d:%d], v[%d:%d]' % (
                VACC + 4 * n, VACC + 4 * n + 3, r, r + 3, VB + 4 * g, VB + 4 * g + 3, VACC + 4 * n, VACC + 4 * n + 3))
            post(i)
    def stash_stats(b):
        allred8('v_add_f32', [VL], [VT])
        e('v_mov_b32 v%d, v%d' % (VT, VMT))
        e('v_mov_b32 v%d, v%d' % (VT + 1, VL))
        e('s_lshl_b32 s38, s3, 3')
        e('v_mov_b32 v%d, s38' % (VT + 2))
        e('s_mov_b64 exec, 1')
        e('ds_write_b64 v%d, v[%d:%d] offset:%d' % (VT + 2, VT, VT + 1, L_STS + b * 32))
        e('s_mov_b64 exec, -1')
        e('v_lshrrev_b32 v%d, 5, v1' % (VT + 3))
        e('v_mul_u32_u24 v%d, 768, v%d' % (VT + 3, VT + 3))
        e('v_bfe_u32 v%d, v1, 4, 1' % (VT + 4))
        e('v_lshl_add_u32 v%d, v%d, 7, v%d' % (VT + 3, VT + 4, VT + 3))
        e('v_and_b32 v%d, 7, v1' % (VT + 4))
        e('v_lshl_add_u32 v%d, v%d, 4, v%d' % (VT + 3, VT + 4, VT + 3))
        e('s_mul_i32 s38, s3, 1536')
        e('v_add_u32 v%d, s38, v%d' % (VT + 3, VT + 3))
        if b == 1:
            e('s_mul_i32 s38, s3, 6144')
            e('v_lshl_add_u32 v35, v1, 4, s38')
            e('s_lshl_b32 s38, s3, 5')
            e('v_mov_b32 v%d, s38' % (VT + 4))
            e('s_lshl_b32 s38, s2, 1')
            e('s_add_u32 s38, s38, s3')
            e('s_lshl_b32 s38, s38, 10')
            e('s_add_u32 s38, s38, %d' % OA)
            e('v_lshl_add_u32 v%d, v1, 4, s38' % (VT + 5))
    def stash_acc(b):
        e('s_mov_b32 exec_lo, 0x00ff00ff')
        e('s_mov_b32 exec_hi, 0xff00ff00')
        for n in range(3):
            e('ds_write_b128 v%d, v[%d:%d] offset:%d' % (VT + 3, VACC + 4 * n, VACC + 4 * n + 3, L_ST + b * 6144 + n * 256))
        e('s_mov_b64 exec, -1')

    nxt = [PRE]
    def mk(base):
        def pre(i):
            k = base + i
            e.wait_vm(('kv', k))
            while nxt[0] <= k + D and (nxt[0] < 48 or nxt[0] - 48 < k):
                issue_abs(nxt[0]); nxt[0] += 1
        def post(i):
            k = base + i
            if k < PRE:
                want = PRE + min(k + 1, burst + max(0, (k + 1 - burst) // catch))
                while nxt[0] < want and (nxt[0] < 48 or nxt[0] - 48 <= k):
                    issue_abs(nxt[0]); nxt[0] += 1
        return pre, post
    for s in range(3):
        pre, post = mk(24 * s)
        step(24 * s if s < 2 else 0, pre, post)
    assert nxt[0] == 72 + D
    stamp(3)
    e('s_mov_b32 s30, s33')
    e('s_mov_b32 s39, 3')
    e.vq = [('lp', i) for i in range(D)]
    e.label('L_loop')
    e('s_cmp_lg_u32 s39, 8')
    e('s_cbranch_scc1 L_noswitch')
    stash_stats(0)
    stash_acc(0)
    load_q(1)
    reset_acc()
    stamp(4)
    e.label('L_noswitch')
    e('s_cmp_eq_u32 s39, 7')
    e('s_cselect_b32 s31, %d, %d' % (KVB // 2 - 7 * 49152, 0))
    e('s_cselect_b32 s38, 0, 49152')
    e('s_add_u32 s31, s31, s38')
    e('s_add_u32 s31, s31, s30')
    def pre(i):
        e.wait_vm(('lp', i))
        k = i + D
        if k < 24: kvload(k, k, 's30', ('lp', k))
        else: kvload(k - 24, k - 24, 's31', ('lp', k - 24))
    step(0, pre, lambda i: None)
    e('s_mov_b32 s30, s31')
    e('s_add_u32 s39, s39, 1')
    e('s_cmp_lt_u32 s39, 15')
    e('s_cbranch_scc1 L_loop')
    assert e.vq == [('lp', i) for i in range(D)]
    def pre(i):
        e.wait_vm(('lp', i))
        k = i + D
        if k < 24: kvload(k, k, 's30', ('lp', k))
    step(0, pre, lambda i: None, last=True)
    stamp(5)
    stash_acc(1)
    e('s_waitcnt lgkmcnt(0)')
    e('s_barrier')
    X = RING + 96
    e('s_cmp_ge_u32 s3, 2')
    e('s_cbranch_scc1 L_exit')
    e('ds_read_b128 v[%d:%d], v%d offset:%d' % (X + 32, X + 35, VT + 4, L_STS))
    e('ds_read_b128 v[%d:%d], v%d offset:%d' % (X + 36, X + 39, VT + 4, L_STS + 16))
    for k in range(8):
        e('ds_read_b128 v[%d:%d], v35 offset:%d' % (X + 4 * k, X + 4 * k + 3, L_ST + 768 * k))
    e('s_waitcnt lgkmcnt(8)')
    MT = [X + 32, X + 34, X + 36, X + 38]; LL = [X + 33, X + 35, X + 37, X + 39]
    e('v_max3_f32 v%d, v%d, v%d, v%d' % (X + 40, MT[0], MT[1], MT[2]))
    e('v_max_f32 v%d, v%d, v%d' % (X + 40, X + 40, MT[3]))
    for w in range(4): e('v_sub_f32 v%d, v%d, v%d' % (MT[w], MT[w], X + 40))
    for w in range(4): e('v_exp_f32 v%d, v%d' % (MT[w], MT[w]))
    e('v_mul_f32 v%d, v%d, v%d' % (X + 41, MT[0], LL[0]))
    for w in range(1, 4): e('v_fma_f32 v%d, v%d, v%d, v%d' % (X + 41, MT[w], LL[w], X + 41))
    e('s_waitcnt lgkmcnt(0)')
    for w in range(4):
        for r in range(4): e('v_add_f32 v%d, v%d, v%d' % (X + 8 * w + r, X + 8 * w + r, X + 8 * w + 4 + r))
    for r in range(4): e('v_mul_f32 v%d, v%d, v%d' % (X + r, X + r, MT[0]))
    for w in range(1, 4):
        for r in range(4): e('v_fma_f32 v%d, v%d, v%d, v%d' % (X + r, X + 8 * w + r, MT[w], X + r))
    e('s_mov_b32 exec_lo, 0')
    e('s_mov_b32 exec_hi, 0x10000')
    e('v_mov_b32 v%d, v%d' % (X, X + 40))
    e('v_mov_b32 v%d, v%d' % (X + 1, X + 41))
    e('v_mov_b32 v%d, 0' % (X + 2))
    e('v_mov_b32 v%d, 0' % (X + 3))
    e('s_mov_b32 exec_lo, -1')
    e('s_mov_b32 exec_hi, 0x1ffff')
    for r in range(4): e('v_min_u32 v%d, -2, v%d' % (X + r, X + r))
    e('global_store_dwordx4 v%d, v[%d:%d], %s %s' % (VT + 5, X, X + 3, P['ws'], hpol))
    stamp(6)
    e('s_branch L_exit')

    e.label('L_helper')
    e.vq = []
    XR, WR, VMh, T = 8, 64, 24, 40
    if prio: e('s_setprio %d' % prio)
    e('s_sub_u32 s29, s3, 4')
    e('v_lshlrev_b32 v2, 2, v1')
    e('s_mul_i32 s30, s2, 2731')
    e('s_lshr_b32 s30, s30, 16')
    e('s_mul_i32 s31, s30, 24')
    e('s_sub_u32 s31, s2, s31')
    e('s_mul_i32 s32, s31, 21846')
    e('s_lshr_b32 s32, s32, 16')
    e('s_mul_i32 s33, s32, 3')
    e('s_sub_u32 s33, s31, s33')
    e('s_mul_i32 s34, s2, 3')
    e('s_add_u32 s34, s34, s29')
    e('s_add_u32 s35, s2, 768')
    e('s_mov_b32 s46, 3072')
    e('s_cmp_lt_u32 s29, 3')
    e('s_cselect_b32 s30, s4, s30')
    e('s_cselect_b32 s32, s5, s32')
    e('s_cselect_b32 s33, s29, s33')
    e('s_cselect_b32 s34, s34, s35')
    e('s_cselect_b32 s35, 12288, s46')
    e('s_cselect_b32 s18, %d, %d' % (640 * 12288, 0))
    e('s_cselect_b32 s36, 0, %d' % (640 * 3072))
    e('s_add_u32 s18, s18, s36')
    e('s_mov_b32 s19, 0x20000')
    e('s_mul_i32 s36, s32, 80')
    e('s_mul_i32 s37, s36, s35')
    e('s_mul_i32 s38, s30, 384')
    e('s_add_u32 s37, s37, s38')
    e('s_lshl_b32 s38, s33, 7')
    e('s_add_u32 s37, s37, s38')
    e('s_mul_i32 s38, s35, 10')
    e('v_lshrrev_b32 v3, 3, v1')
    e('v_mul_lo_u32 v3, v3, s38')
    e('v_and_b32 v4, 7, v1')
    e('v_lshl_add_u32 v3, v4, 4, v3')
    e('s_mov_b32 s48, %d' % EP)
    e('s_waitcnt lgkmcnt(0)')
    e('s_load_dword s47, %s, s48' % P['ws'])
    e('s_cmp_lt_u32 s29, 3')
    e('s_cselect_b32 s16, s70, s76')
    e('s_cselect_b32 s17, s71, s77')
    e('s_cselect_b32 s45, 0, s2')
    e('s_cmp_lt_u32 s45, 192')
    e('s_cselect_b32 s45, 1, 0')
    e('s_cbranch_scc0 L_hskip1')
    for b in range(2):
        for i in range(5):
            e('global_load_dword v%d, v2, %s offset:%d' % (XR + 5 * b + i, P['x'], b * 1280 + i * 256), tag='x')
    for g in range(10):
        e('buffer_load_dwordx4 v[%d:%d], v3, s[16:19], s37 offen nt' % (WR + 4 * g, WR + 4 * g + 3), tag=('w', g))
        if g < 9: e('s_add_u32 s37, s37, s35')
    e.label('L_hskip1')
    if stamps: e('v_writelane_b32 v63, s90, 0')
    stamp(8)
    e('s_add_u32 s26, s4, 32')
    e('s_cmp_eq_u32 s5, 5')
    e('s_cselect_b32 s26, s4, s26')
    e('s_mul_i32 s25, s26, 13108')
    e('s_lshr_b32 s25, s25, 16')
    e('s_mul_i32 s24, s25, 5')
    e('s_sub_u32 s24, s26, s24')
    e('s_mul_i32 s27, s25, 3')
    e('s_add_u32 s27, s27, 32')
    e('s_cmp_lt_u32 s26, 40')
    e('s_cselect_b32 s6, 1, 3')
    e('s_cmp_lt_u32 s4, 10')
    e('s_cselect_b32 s28, 2, 3')
    e('s_cmp_eq_u32 s5, 7')
    e('s_cselect_b32 s6, s28, s6')
    e('s_cmp_lt_u32 s5, 5')
    e('s_cselect_b32 s6, 0, s6')
    e('s_cselect_b32 s24, s5, s24')
    e('s_cselect_b32 s27, s4, s27')
    e('s_mul_i32 s7, s24, %d' % NMSG)
    e('s_add_u32 s7, s7, s27')
    e('s_lshl_b32 s7, s7, 10')
    e('s_add_u32 s7, s7, %d' % OB)
    masks(VMh, T + 6)
    e('s_waitcnt lgkmcnt(0)')
    e('s_mul_i32 s47, s47, 1664525')
    e('s_add_u32 s47, s47, 1013904223')
    e('s_cmp_eq_u32 s45, 0')
    e('s_cbranch_scc1 L_hbar')
    for r in range(4): e('v_mov_b32 v%d, -1' % (T + r))
    e('s_lshl_b32 s38, s2, 1')
    e('s_add_u32 s38, s38, s29')
    e('s_lshl_b32 s38, s38, 10')
    e('s_add_u32 s38, s38, %d' % OA)
    e('s_cmp_eq_u32 s29, 2')
    e('s_cselect_b32 s38, s7, s38')
    e('s_cselect_b32 s39, s6, 0')
    e('s_cselect_b32 s41, -1, 0x1ffff')
    e('v_lshl_add_u32 v%d, v1, 4, s38' % (T + 4))
    e('s_cmp_eq_u32 s29, 3')
    e('s_cselect_b32 s39, 2, s39')
    e('s_cmp_ge_u32 s39, 2')
    e('s_cbranch_scc1 L_noclear')
    e('s_mov_b32 exec_hi, s41')
    vq_save = list(e.vq)
    e('global_store_dwordx4 v%d, v[%d:%d], %s %s' % (T + 4, T, T + 3, P['ws'], hpol))
    e('s_cmp_eq_u32 s39, 0')
    e('s_cbranch_scc1 L_noclear')
    e('global_store_dwordx4 v%d, v[%d:%d], %s offset:1024 %s' % (T + 4, T, T + 3, P['ws'], hpol))
    e('global_store_dwordx4 v%d, v[%d:%d], %s offset:2048 %s' % (T + 4, T, T + 3, P['ws'], hpol))
    e.vq = vq_save
    e.label('L_noclear')
    e('s_mov_b64 exec, -1')
    F0 = 108
    e.wait_vm('x')
    stamp(1)
    for k in range(10):
        e('v_lshlrev_b32 v%d, 16, v%d' % (F0 + 2 * k, XR + k))
        e('v_and_b32 v%d, 0xffff0000, v%d' % (F0 + 2 * k + 1, XR + k))
    SM = [T + 8, T + 9]; TM = [T + 10, T + 11]
    for b in range(2):
        e('v_add_f32 v%d, v%d, v%d' % (SM[b], F0 + 10 * b, F0 + 10 * b + 1))
    for k in range(2, 10):
        for b in range(2): e('v_add_f32 v%d, v%d, v%d' % (SM[b], SM[b], F0 + 10 * b + k))
    allred_lo8('v_add_f32', SM)
    allred8('v_add_f32', SM, TM)
    e('s_mov_b32 s38, 0x3acccccd')
    for b in range(2): e('v_mul_f32 v%d, s38, v%d' % (SM[b], SM[b]))
    VR = [T + 12, T + 13]
    for k in range(10):
        for b in range(2): e('v_sub_f32 v%d, v%d, v%d' % (TM[b], F0 + 10 * b + k, SM[b]))
        for b in range(2):
            if k == 0: e('v_mul_f32 v%d, v%d, v%d' % (VR[b], TM[b], TM[b]))
            else: e('v_fma_f32 v%d, v%d, v%d, v%d' % (VR[b], TM[b], TM[b], VR[b]))
    allred_lo8('v_add_f32', VR)
    allred8('v_add_f32', VR, TM)
    for b in range(2): e('v_mul_f32 v%d, s38, v%d' % (VR[b], VR[b]))
    for b in range(2): rnd(SM[b])
    for b in range(2): rnd(VR[b])
    for b in range(2): e('v_add_f32 v%d, 0x3727c5ac, v%d' % (VR[b], VR[b]))
    for b in range(2): rnd(VR[b])
    for b in range(2): e('v_sqrt_f32 v%d, v%d' % (VR[b], VR[b]))
    for b in range(2): rnd(VR[b])
    for b in range(2): e('v_rcp_f32 v%d, v%d' % (TM[b], VR[b]))
    for b in range(2):
        for k in range(10): e('v_sub_f32 v%d, v%d, v%d' % (F0 + 10 * b + k, F0 + 10 * b + k, SM[b]))
    for k in range(20): rnd(F0 + k)
    G0 = 128
    for b in range(2):
        for k in range(10): e('v_mul_f32 v%d, v%d, v%d' % (G0 + 10 * b + k, F0 + 10 * b + k, TM[b]))
    for b in range(2):
        for k in range(10): e('v_fma_f32 v%d, -v%d, v%d, v%d' % (F0 + 10 * b + k, G0 + 10 * b + k, VR[b], F0 + 10 * b + k))
    for b in range(2):
        for k in range(10): e('v_fma_f32 v%d, v%d, v%d, v%d' % (G0 + 10 * b + k, F0 + 10 * b + k, TM[b], G0 + 10 * b + k))
    for k in range(20): e('v_cvt_pk_bf16_f32 v%d, v%d, v%d' % (G0 + k, G0 + k, G0 + k))
    e('v_lshlrev_b32 v%d, 3, v1' % (T + 8))
    for b in range(2):
        for i in range(5):
            e('ds_write_b64 v%d, v[%d:%d] offset:%d' % (T + 8, G0 + 10 * b + 2 * i, G0 + 10 * b + 2 * i + 1, L_XN + b * 2560 + i * 512))
    e('v_bfe_u32 v%d, v1, 3, 1' % (T + 8))
    e('v_mul_u32_u24 v%d, 2560, v%d' % (T + 8, T + 8))
    e('v_lshrrev_b32 v%d, 4, v1' % (T + 9))
    e('v_mul_u32_u24 v%d, 80, v%d' % (T + 9, T + 9))
    e('s_lshl_b32 s38, s36, 2')
    e('v_add3_u32 v%d, v%d, v%d, s38' % (T + 8, T + 8, T + 9))
    e('s_waitcnt lgkmcnt(0)')
    for i in range(5):
        e('ds_read_b128 v[%d:%d], v%d offset:%d' % (F0 + 4 * i, F0 + 4 * i + 3, T + 8, L_XN + 16 * i))
    A1, A2 = 28, 32
    for r in range(8): e('v_mov_b32 v%d, 0' % (A1 + r))
    e('s_lshl_b32 s38, s34, 10')
    e('v_lshl_add_u32 v%d, v1, 4, s38' % (T + 10))
    e('v_mov_b32 v%d, s47' % (T + 13))
    e('v_mov_b32 v%d, s47' % (T + 15))
    e('s_waitcnt lgkmcnt(0)')
    stamp(2)
    BB = 148
    for g in range(10):
        for k in range(2):
            for d in range(4): e('v_and_b32 v%d, v%d, v%d' % (BB + 8 * g + 4 * k + d, F0 + 10 * k + g, VMh + d))
    for g in range(10):
        e.wait_vm(('w', g))
        for k, A in enumerate((A1, A2)):
            bb = BB + 8 * g + 4 * k
            e('v_mfma_f32_16x16x32_bf16 v[%d:%d], v[%d:%d], v[%d:%d], v[%d:%d]' % (A, A + 3, WR + 4 * g, WR + 4 * g + 3, bb, bb + 3, A, A + 3))
    e('s_mov_b32 exec_lo, 0')
    for r in range(4): e('v_mov_b32 v%d, v%d' % (A1 + r, A2 + r))
    e('s_mov_b32 exec_lo, -1')
    e('v_permlane32_swap_b32 v%d, v%d' % (A1, A1 + 2))
    e('v_permlane32_swap_b32 v%d, v%d' % (A1 + 1, A1 + 3))
    e('v_add_f32 v%d, v%d, v%d' % (T + 12, A1, A1 + 2))
    e('v_add_f32 v%d, v%d, v%d' % (T + 14, A1 + 1, A1 + 3))
    e('s_waitcnt vmcnt(0)')
    e('global_store_dwordx4 v%d, v[%d:%d], %s %s' % (T + 10, T + 12, T + 15, P['ws'], hpol))
    stamp(3)
    e('s_cmp_eq_u32 s29, 3')
    e('s_cbranch_scc1 L_hbar')
    G = 64
    def gather(name, sbase):
        e('v_lshl_add_u32 v5, v1, 4, %s' % sbase)
        for i in range(1, 4): e('v_add_u32 v%d, %d, v5' % (5 + i, 6144 * i))
        loads = ['global_load_dwordx4 v[%d:%d], v%d, %s offset:%d %s' % (G + 4 * i, G + 4 * i + 3, 5 + i // 2, P['ws'], 3072 * (i % 2), hpol) for i in range(8)]
        poll(name, loads, [G + 2 * i + 1 for i in range(16)], T, tagged=True, sleep=2)
        for st in (16, 8, 4):
            for r in range(0, st, 2): e('v_add_f32 v%d, v%d, v%d' % (G + r, G + r, G + st + r))
    e('v_bfe_u32 v3, v1, 4, 1')
    e('v_lshlrev_b32 v3, 5, v3')
    e('v_lshrrev_b32 v4, 5, v1')
    e('v_lshl_add_u32 v3, v4, 4, v3')
    e('v_and_b32 v4, 7, v1')
    e('v_add_u32 v3, v3, v4')
    e('v_bfe_u32 v4, v1, 3, 1')
    e('v_mul_u32_u24 v10, 192, v4')
    e('v_add_u32 v10, v10, v3')
    e('s_lshl_b32 s38, s29, 7')
    e('v_lshl_add_u32 v10, v10, 1, s38')
    e('s_mul_i32 s38, s4, 24')
    e('s_add_u32 s38, s38, s29')
    e('s_lshl_b32 s38, s38, 10')
    gather('L_pollQ', 's38')
    stamp(4)
    e('v_cvt_pk_bf16_f32 v%d, v%d, v%d' % (G, G, G + 2))
    e('ds_write_b16 v10, v%d offset:%d' % (G, L_Q))
    e('ds_write_b16_d16_hi v10, v%d offset:%d' % (G, L_Q + 16))
    e('s_waitcnt lgkmcnt(0)')
    e.label('L_hbar')
    e('s_barrier')
    stamp(5)
    e('s_cmp_eq_u32 s6, 3')
    e('s_cbranch_scc1 L_exit')
    e('s_cmp_eq_u32 s6, 2')
    e('s_cbranch_scc1 L_reducer')
    e('s_cmp_eq_u32 s6, 1')
    e('s_cbranch_scc1 L_ffn2')

    WREG = 160
    if wdelay:
        for i in range(wdelay): e('s_sleep 127')
    e('s_mov_b32 s16, s72'); e('s_mov_b32 s17, s73')
    e('s_mov_b32 s18, %d' % (6144 * 1280))
    e('s_mul_i32 s36, s4, %d' % (192 * 1280))
    e('s_lshl_b32 s37, s24, 8')
    e('s_add_u32 s36, s36, s37')
    e('v_lshrrev_b32 v2, 4, v1')
    e('v_mul_u32_u24 v2, %d, v2' % (8 * 1280))
    e('v_and_b32 v3, 15, v1')
    e('v_lshl_add_u32 v2, v3, 4, v2')
    e('s_mul_i32 s37, s29, 12')
    e.vq = []
    for t in range(12):
        e('s_add_u32 s38, s37, %d' % t)
        e('s_lshr_b32 s39, s38, 3')
        e('s_lshl_b32 s39, s39, 5')
        e('s_and_b32 s38, s38, 7')
        e('s_add_u32 s38, s38, s39')
        e('s_mul_i32 s38, s38, 1280')
        e('s_add_u32 s38, s38, s36')
        if t >= 2: e.wait_vm_n(1)
        e('buffer_load_dwordx4 v[%d:%d], v2, s[16:19], s38 offen nt' % (WREG + 4 * t, WREG + 4 * t + 3))
    X = 112
    e('s_lshl_b32 s38, s4, 14')
    e('s_add_u32 s38, s38, %d' % OA)
    e('v_lshrrev_b32 v2, 3, v1')
    e('v_lshl_add_u32 v2, v2, 11, s38')
    e('v_and_b32 v3, 7, v1')
    e('s_mul_i32 s39, s29, 192')
    e('v_lshl_add_u32 v4, v3, 4, v2')
    e('v_add_u32 v4, s39, v4')
    e('v_add_u32 v6, %d, v4' % (1024 + 64))
    e('v_add_u32 v5, 128, v4')
    e('v_add_u32 v7, %d, v4' % (1024 - 64))
    e('v_cmp_gt_u32 vcc, 4, v3')
    e('v_cndmask_b32 v5, v7, v5, vcc')
    e('s_mov_b64 s[44:45], vcc')
    e('s_lshl_b32 s39, s29, 9')
    e('s_add_u32 s39, s39, %d' % L_OD)
    e('v_lshrrev_b32 v7, 4, v1')
    e('v_mul_u32_u24 v7, 96, v7')
    e('v_add_u32 v7, s39, v7')
    e('v_lshl_add_u32 v8, v3, 2, v7')
    e('v_bfe_u32 v9, v1, 3, 1')
    e('v_mul_u32_u24 v9, 48, v9')
    e('v_add_u32 v9, v9, v7')
    e('s_lshl_b32 s38, s29, 10')
    e('v_lshl_add_u32 v10, v1, 4, s38')
    e('v_lshl_add_u32 v11, v1, 4, s7')
    for r in range(4): e('v_mov_b32 v%d, 0' % (A1 + r))
    e.wait_vm_n(0)
    stamp(6)
    e('s_barrier')
    loads = ['global_load_dwordx4 v[%d:%d], v%d, %s %s' % (X + 4 * i, X + 4 * i + 3, 4 + i, P['ws'], hpol) for i in range(3)]
    loads.append('global_load_dwordx2 v[%d:%d], v2, %s offset:768 %s' % (X + 12, X + 13, P['ws'], hpol))
    loads.append('global_load_dwordx2 v[%d:%d], v2, %s offset:1792 %s' % (X + 14, X + 15, P['ws'], hpol))
    poll('L_pollA', loads, range(X, X + 16), T)
    stamp(7)
    M0, L0, M1, L1 = X + 12, X + 13, X + 14, X + 15
    e('v_mov_b32 v%d, v%d' % (X + 16, M0))
    e('v_mov_b32 v%d, v%d' % (X + 17, M1))
    allred8('v_max_f32', [X + 16, X + 17], [X + 18, X + 19])
    e('v_sub_f32 v%d, v%d, v%d' % (M0, M0, X + 16))
    e('v_sub_f32 v%d, v%d, v%d' % (M1, M1, X + 17))
    e('v_exp_f32 v%d, v%d' % (M0, M0))
    e('v_exp_f32 v%d, v%d' % (M1, M1))
    e('v_mul_f32 v%d, v%d, v%d' % (L0, L0, M0))
    e('v_mul_f32 v%d, v%d, v%d' % (L1, L1, M1))
    e('v_cndmask_b32 v%d, v%d, v%d, s[44:45]' % (X + 16, M1, M0))
    for r in range(4): e('v_mul_f32 v%d, v%d, v%d' % (X + r, X + r, M0))
    for r in range(4): e('v_mul_f32 v%d, v%d, v%d' % (X + 8 + r, X + 8 + r, M1))
    for r in range(4): e('v_mul_f32 v%d, v%d, v%d' % (X + 4 + r, X + 4 + r, X + 16))
    allred8('v_add_f32', [L0, L1], [X + 18, X + 19])
    e('v_rcp_f32 v%d, v%d' % (L0, L0))
    e('v_rcp_f32 v%d, v%d' % (L1, L1))
    redscat4([X, X + 4, X + 8])
    e('v_cndmask_b32 v%d, v%d, v%d, s[44:45]' % (X + 16, L1, L0))
    e('v_mul_f32 v%d, v%d, v%d' % (X, X, L0))
    e('v_mul_f32 v%d, v%d, v%d' % (X + 8, X + 8, L1))
    e('v_mul_f32 v%d, v%d, v%d' % (X + 4, X + 4, X + 16))
    for i in range(3): e('v_cvt_pk_bf16_f32 v%d, v%d, v%d' % (X + 4 * i, X + 4 * i, X + 4 * i))
    for i in range(3): e('ds_write_b32 v8, v%d offset:%d' % (X + 4 * i, 32 * i))
    O = 136
    for i in range(3):
        e('ds_read_b128 v[%d:%d], v9 offset:%d' % (O + 4 * i, O + 4 * i + 3, 16 * i))
    def proj(nt, O, W, BR):
        for t in range(nt + 1):
            if t < nt:
                if t % 4 == 0: e('s_waitcnt lgkmcnt(%d)' % (nt // 4 - 1 - t // 4))
                for d in range(4): e('v_and_b32 v%d, v%d, v%d' % (BR + 4 * t + d, O + t, VMh + d))
            if t > 0:
                bb = BR + 4 * (t - 1)
                e('v_mfma_f32_16x16x32_bf16 v[%d:%d], v[%d:%d], v[%d:%d], v[%d:%d]' % (A1, A1 + 3, W + 4 * (t - 1), W + 4 * (t - 1) + 3, bb, bb + 3, A1, A1 + 3))
    proj(12, O, WREG, 64)
    e('ds_write_b128 v10, v[%d:%d] offset:%d' % (A1, A1 + 3, L_YP))
    e('s_waitcnt lgkmcnt(0)')
    e('s_barrier')
    e('s_cmp_lg_u32 s29, 0')
    e('s_cbranch_scc1 L_exit')
    for w in range(1, 4):
        e('ds_read_b128 v[%d:%d], v10 offset:%d' % (X + 4 * w, X + 4 * w + 3, L_YP + 1024 * w))
    e('s_waitcnt lgkmcnt(0)')
    for r in range(4): e('v_add_f32 v%d, v%d, v%d' % (A1 + r, A1 + r, X + 4 + r))
    for r in range(4): e('v_add_f32 v%d, v%d, v%d' % (X + 8 + r, X + 8 + r, X + 12 + r))
    for r in range(4): e('v_add_f32 v%d, v%d, v%d' % (A1 + r, A1 + r, X + 8 + r))
    for r in range(4): e('v_min_u32 v%d, -2, v%d' % (A1 + r, A1 + r))
    e('global_store_dwordx4 v11, v[%d:%d], %s %s' % (A1, A1 + 3, P['ws'], hpol))
    stamp(9)
    e('s_branch L_exit')

    e.label('L_ffn2')
    e('s_cmp_eq_u32 s29, 3')
    e('s_cbranch_scc1 L_exit')
    e.vq = []
    e('s_mov_b32 s16, s80'); e('s_mov_b32 s17, s81')
    e('s_mov_b32 s18, %d' % (1536 * 1280))
    e('s_mul_i32 s36, s25, 192')
    e('s_lshl_b32 s37, s29, 6')
    e('s_add_u32 s36, s36, s37')
    e('s_lshl_b32 s38, s36, 1')
    e('v_lshl_add_u32 v9, v3, 1, s38')
    e('global_load_ushort v12, v9, %s' % P['b1'])
    e('global_load_ushort v13, v9, %s offset:16' % P['b1'])
    e('s_mul_i32 s36, s36, 1280')
    e('s_lshl_b32 s37, s24, 8')
    e('s_add_u32 s36, s36, s37')
    e('v_lshrrev_b32 v2, 4, v1')
    e('v_mul_u32_u24 v2, %d, v2' % (16 * 1280))
    e('v_and_b32 v11, 15, v1')
    e('v_lshl_add_u32 v2, v11, 4, v2')
    for t in range(16):
        if t >= 2: e.wait_vm_n(1)
        e('buffer_load_dwordx4 v[%d:%d], v2, s[16:19], s36 offen nt' % (WREG + 4 * t, WREG + 4 * t + 3))
        e('s_add_u32 s36, s36, 1280')
    e('s_mul_i32 s38, s25, 24')
    e('s_add_u32 s38, s38, s29')
    e('s_add_u32 s38, s38, 768')
    e('s_lshl_b32 s38, s38, 10')
    gather('L_pollH', 's38')
    H = [G, G + 2]
    for r in H: rnd(r)
    for k in range(2): e('v_lshlrev_b32 v%d, 16, v%d' % (12 + k, 12 + k))
    for k in range(2): e('v_add_f32 v%d, v%d, v%d' % (H[k], H[k], 12 + k))
    for r in H: rnd(r)
    for r in H:
        e('v_cmp_lt_f32 vcc, 0, v%d' % r)
        e('v_cndmask_b32 v%d, 0, v%d, vcc' % (r, r))
    for r in H: e('v_mul_f32 v%d, v%d, v%d' % (r, r, r))
    for r in H: e('v_cvt_pk_bf16_f32 v%d, v%d, v%d' % (r, r, r))
    e('s_lshl_b32 s39, s29, 9')
    e('s_add_u32 s39, s39, %d' % L_OD)
    e('v_lshl_add_u32 v8, v4, 8, s39')
    e('v_lshl_add_u32 v7, v3, 2, v8')
    e('v_lshrrev_b32 v9, 4, v1')
    e('v_lshl_add_u32 v9, v9, 6, v8')
    e('ds_write_b32 v7, v%d' % H[0])
    e('ds_write_b32 v7, v%d offset:32' % H[1])
    O = 136
    for i in range(4):
        e('ds_read_b128 v[%d:%d], v9 offset:%d' % (O + 4 * i, O + 4 * i + 3, 16 * i))
    for r in range(4): e('v_mov_b32 v%d, 0' % (A1 + r))
    e('s_lshl_b32 s38, s29, 10')
    e('s_add_u32 s38, s38, s7')
    e('v_lshl_add_u32 v11, v1, 4, s38')
    proj(16, O, WREG, 68)
    for r in range(4): e('v_min_u32 v%d, -2, v%d' % (A1 + r, A1 + r))
    e('global_store_dwordx4 v11, v[%d:%d], %s %s' % (A1, A1 + 3, P['ws'], hpol))
    stamp(9)
    e('s_branch L_exit')

    e.label('L_reducer')
    e.vq = []
    X = 112
    VT = T + 4
    e('v_mul_u32_u24 v2, 3072, v1')
    e('v_add_u32 v2, 2048, v2')
    for i in range(1, 4): e('v_add_u32 v%d, %d, v2' % (2 + i, 64 * 3072 * i))
    poll('L_pollC', ['global_load_dwordx2 v[%d:%d], v%d, %s %s' % (X + 2 * i, X + 2 * i + 1, 2 + i, P['ws'], hpol) for i in range(4)],
         [X + 1, X + 3, X + 5, X + 7], T, tagged=True, sleep=4)
    e('s_lshl_b32 s38, s4, 2')
    e('s_add_u32 s38, s38, s29')
    e('s_lshr_b32 s41, s38, 3')
    e('s_and_b32 s44, s38, 7')
    e('s_mul_i32 s39, s41, %d' % (NMSG * 1024))
    e('s_lshl_b32 s45, s44, 7')
    e('s_add_u32 s39, s39, s45')
    e('s_add_u32 s39, s39, %d' % OB)
    e('v_lshrrev_b32 v%d, 3, v1' % VT)
    e('v_lshl_add_u32 v%d, v%d, 10, s39' % (VT, VT))
    e('v_and_b32 v%d, 7, v1' % (VT + 7))
    e('v_lshl_add_u32 v%d, v%d, 4, v%d' % (VT, VT + 7, VT))
    for i in range(1, 7): e('v_add_u32 v%d, %d, v%d' % (VT + i, 8192 * i, VT))
    e('s_lshl_b32 s39, s41, 7')
    e('s_lshr_b32 s45, s44, 1')
    e('s_lshl_b32 s45, s45, 5')
    e('s_add_u32 s39, s39, s45')
    e('v_lshrrev_b32 v%d, 4, v1' % (X + 32))
    e('v_lshl_add_u32 v%d, v%d, 3, v%d' % (X + 32, X + 32, VT + 7))
    e('v_add_u32 v%d, s39, v%d' % (X + 32, X + 32))
    e('v_lshlrev_b32 v%d, 1, v%d' % (X + 32, X + 32))
    e('s_and_b32 s45, s44, 1')
    e('s_mul_i32 s45, s45, 1280')
    e('v_add_u32 v%d, s45, v%d' % (X + 33, X + 32))
    e('global_load_ushort v%d, v%d, %s' % (X + 34, X + 32, P['b2']))
    e('global_load_ushort v%d, v%d, %s' % (X + 35, X + 33, P['x']))
    poll('L_pollF', ['global_load_dwordx4 v[%d:%d], v%d, %s %s' % (X + 16 + 4 * i, X + 19 + 4 * i, VT + 4 + i, P['ws'], hpol) for i in range(3)],
         range(X + 16, X + 28), T, sleep=8)
    for r in range(4): e('v_add_f32 v%d, v%d, v%d' % (X + 16 + r, X + 16 + r, X + 20 + r))
    for r in range(4): e('v_add_f32 v%d, v%d, v%d' % (X + 16 + r, X + 16 + r, X + 24 + r))
    redscat4([X + 16])
    F = X + 16
    rnd(F)
    e('v_lshlrev_b32 v%d, 16, v%d' % (X + 34, X + 34))
    e('v_lshlrev_b32 v%d, 16, v%d' % (X + 35, X + 35))
    e('v_add_f32 v%d, v%d, v%d' % (F, F, X + 34))
    rnd(F)
    e('v_mul_f32 v%d, 0x%x, v%d' % (F + 1, LOG2E, F))
    e('v_exp_f32 v%d, -v%d' % (F + 1, F + 1))
    e('v_add_f32 v%d, 1.0, v%d' % (F + 1, F + 1))
    e('v_rcp_f32 v%d, v%d' % (F + 1, F + 1))
    e('v_mul_f32 v%d, v%d, v%d' % (F, F, F + 1))
    rnd(F)
    e('v_mov_b32 v%d, %d' % (X + 36, EP))
    e('v_mov_b32 v%d, s47' % (X + 37))
    stamp(6)
    e('s_barrier')
    poll('L_pollB', ['global_load_dwordx4 v[%d:%d], v%d, %s %s' % (X + 4 * i, X + 4 * i + 3, VT + i, P['ws'], hpol) for i in range(4)], range(X, X + 16), T)
    stamp(7)
    for r in range(4): e('v_add_f32 v%d, v%d, v%d' % (X + r, X + r, X + 4 + r))
    for r in range(4): e('v_add_f32 v%d, v%d, v%d' % (X + 8 + r, X + 8 + r, X + 12 + r))
    for r in range(4): e('v_add_f32 v%d, v%d, v%d' % (X + r, X + r, X + 8 + r))
    redscat4([X])
    rnd(X)
    e('v_mul_f32 v%d, v%d, v%d' % (X, X, F))
    rnd(X)
    e('v_add_f32 v%d, v%d, v%d' % (X, X, X + 35))
    e('v_cvt_pk_bf16_f32 v%d, v%d, v%d' % (X, X, X))
    e('s_mov_b32 exec_lo, 0x00ff00ff')
    e('s_mov_b32 exec_hi, 0x00ff00ff')
    e('global_store_short v%d, v%d, %s' % (X + 33, X, P['out']))
    e('s_cmp_lg_u32 s38, 0')
    e('s_cbranch_scc1 L_noep')
    e('s_mov_b64 exec, 1')
    e('global_store_dword v%d, v%d, %s' % (X + 36, X + 37, P['ws']))
    e.label('L_noep')
    if padto:
        e.label('L_pad')
        e('s_memrealtime s[92:93]')
        e('s_waitcnt lgkmcnt(0)')
        e('s_sub_u32 s92, s92, s90')
        e('s_cmp_lt_u32 s92, %d' % padto)
        e('s_cbranch_scc1 L_pad')
    if stamps:
        e('s_waitcnt vmcnt(0)')
        stamp(9)
    e.label('L_exit')
    dump_stamps()
    e.label('L_end')
    body = e.text()
    txt = HEAD + '; @launch grid=(256,1,1) block=(512,1,1) lds=%d\n' % (lds or LDS_BYTES)
    txt += '.amdgcn_target "amdgcn-amd-amdhsa--gfx950"\n.text\n.globl %s_kernel\n.p2align 8\n.type %s_kernel,@function\n%s_kernel:\n' % (NAME, NAME, NAME)
    txt += body + '    s_endpgm\n'
    txt += '''.section .rodata,"a"
.p2align 6
.amdhsa_kernel %s_kernel
  .amdhsa_next_free_vgpr 256
  .amdhsa_next_free_sgpr 96
  .amdhsa_accum_offset 256
  .amdhsa_group_segment_fixed_size 0
  .amdhsa_kernarg_size 104
  .amdhsa_user_sgpr_count 2
  .amdhsa_user_sgpr_kernarg_segment_ptr 1
  .amdhsa_system_sgpr_workgroup_id_x 1
  .amdhsa_float_denorm_mode_32 3
.end_amdhsa_kernel
''' % NAME
    return txt

if __name__ == '__main__':
    kw = eval('dict(%s)' % (sys.argv[2] if len(sys.argv) > 2 else ''))
    open(sys.argv[1], 'w').write(gen(**kw))
```
